```python
import torch

def _softmax(x, axis=-1):
    return torch.softmax(x, dim=axis)
def _gelu(x):
    return torch.nn.functional.gelu(x, approximate="tanh")
def _silu(x):
    return torch.nn.functional.silu(x)
def _sigmoid(x):
    return torch.sigmoid(x)
def _layernorm(x, axis=-1, eps=1e-5):
    m = x.mean(dim=axis, keepdim=True)
    v = x.var(dim=axis, keepdim=True, unbiased=False)
    return (x - m) / torch.sqrt(v + eps)
def _scatter_add(tgt, idx, src, axis=0):
    return tgt.clone().index_add_(axis, idx, src)
def _segment_sum(src, seg, n):
    out = torch.zeros((n,) + src.shape[1:], dtype=src.dtype)
    return out.index_add_(0, seg, src)
def _pad(x, pw):
    flat = tuple(v for pair in reversed(pw) for v in pair)
    return torch.nn.functional.pad(x, flat)

kernel_name = 'standalone__weight_only_int_omniquant__prompt'

def setup_inputs():

    _w = (lambda a: (lambda t: t.to(torch.bfloat16) if t.is_floating_point() else t)(torch.as_tensor(a)))
    B, S, D, F = 1, 2048, 1024, 3584
    bits = 3
    G = 128 if 128 > 0 else D
    D = (D // G) * G
    ng = D // G
    qmax = (1 << bits) - 1
    qw = torch.randint(0, qmax + 1, (D, F)).to(torch.int32)
    scales = (torch.abs((lambda *s: torch.randn(*s, dtype=torch.bfloat16) * 0.05)(ng, F)) * 0.05 + 0.01).to(float)
    zeros = torch.randint(0, qmax + 1, (ng, F)).to(float)
    act_scale = (torch.abs((lambda *s: torch.randn(*s, dtype=torch.bfloat16) * 0.05)(D)) * 0.5 + 0.5).to(float)
    return {
        "x": _w((lambda *s: torch.randn(*s, dtype=torch.bfloat16) * 0.05)(B, S, D)),
        "qw": _w(qw),
        "scales": _w(scales),
        "zeros": _w(zeros),
        "act_scale": _w(act_scale),
    }

def reference(x, qw, scales, zeros, act_scale):
    B, S, D = x.shape
    ng, F = scales.shape
    G = D // ng
    s = (lambda x, n, axis: torch.repeat_interleave(x, n, dim=axis))(scales, G, axis=0)
    z = (lambda x, n, axis: torch.repeat_interleave(x, n, dim=axis))(zeros, G, axis=0)
    w = ((lambda x, dt: x.to(dt))(qw, x.dtype) - z) * s
    xs = x * (lambda x, dt: x.to(dt))(act_scale, x.dtype)
    return torch.einsum("bsd,df->bsf", xs, w)
```

```python
KN = 'standalone__weight_only_int_omniquant__prompt_kernel'
M, N, K = 2048, 3584, 1024
NS = 16
NWG = 224
WROW = N * 4
OROW = N * 2
LDS_W = 131072
LDS_T = LDS_W + 16384

class G:
    def __init__(self):
        self.L = []
    def __call__(self, s):
        self.L.append(s)
    def text(self):
        return '\n'.join(self.L) + '\n'

class VM:
    def __init__(self, g):
        self.g = g; self.q = []
    def issue(self, ins, tag):
        self.g(ins); self.q.append(tag)
        assert len(self.q) <= 63, len(self.q)
    def wait(self, tag):
        idx = [i for i, t in enumerate(self.q) if t == tag]
        if not idx: return
        n = len(self.q) - 1 - idx[-1]
        self.g(f's_waitcnt vmcnt({n})')
        self.q = self.q[idx[-1] + 1:]

def gen(D=4, store_flags='', wload_flags='', aload_flags='', cprio=0, pprio=0, stamps=False, header=None):
    g = G()
    if header:
        for h in header: g(h)
    g(f'; @launch grid=({NWG},1,1) block=(512,1,1) lds=163840')
    g('.amdgcn_target "amdgcn-amd-amdhsa--gfx950"')
    g('.text'); g(f'.globl {KN}'); g('.p2align 8'); g(f'.type {KN},@function'); g(f'{KN}:')
    g('s_load_dwordx8 s[4:11], s[0:1], 0')
    g('s_load_dwordx4 s[12:15], s[0:1], 32')
    if stamps:
        g('s_load_dwordx2 s[60:61], s[0:1], 56')
        g('s_memrealtime s[62:63]')
        g('s_memtime s[64:65]')
    g(f's_cmp_ge_u32 s2, {NWG}')
    g('s_cbranch_scc1 L_end')
    g('v_lshrrev_b32 v1, 6, v0')
    g('v_and_b32 v0, 63, v0')
    g('s_and_b32 s30, s2, 7')
    g('v_readfirstlane_b32 s3, v1')
    g('s_lshr_b32 s31, s2, 3')
    g('s_and_b32 s28, s30, 1'); g('s_lshl_b32 s28, s28, 2'); g('s_and_b32 s48, s31, 3'); g('s_add_u32 s28, s28, s48')
    g('s_lshr_b32 s29, s30, 1'); g('s_mul_i32 s29, s29, 7'); g('s_lshr_b32 s48, s31, 2'); g('s_add_u32 s29, s29, s48')
    g('s_cmp_ge_u32 s3, 4')
    g('s_cbranch_scc1 L_prod')

    if cprio: g(f's_setprio {cprio}')
    g('v_lshrrev_b32 v1, 4, v0'); g(f'v_mul_u32_u24 v1, {OROW}, v1'); g('v_and_b32 v2, 15, v0'); g('v_lshlrev_b32 v2, 4, v2')
    g('v_add_u32 v1, v1, v2')
    g('v_lshlrev_b32 v2, 4, v0')
    g('s_lshl_b32 s48, s29, 8')
    g('s_lshl_b32 s49, s3, 11'); g(f's_add_u32 s49, s49, {LDS_T}')
    g('s_mov_b32 m0, s49')
    g('s_mov_b32 s27, 0x20000')
    g('s_waitcnt lgkmcnt(0)')
    g('s_cmp_eq_u32 s3, 3'); g('s_cbranch_scc1 L_tab_done')
    g('s_cmp_eq_u32 s3, 2'); g('s_cbranch_scc1 L_tab_a')
    g('s_cmp_eq_u32 s3, 0')
    g('s_cselect_b32 s24, s8, s10'); g('s_cselect_b32 s25, s9, s11')
    g('s_add_u32 s24, s24, s48'); g('s_addc_u32 s25, s25, 0')
    g(f's_sub_u32 s26, {8 * OROW}, s48')
    g(f's_mov_b32 s50, {4 * OROW - 1024}')
    g(f'buffer_load_dwordx4 v1, s[24:27], 0 offen lds')
    g(f'buffer_load_dwordx4 v1, s[24:27], s50 offen offset:1024 lds')
    g('s_branch L_tab_done')
    g('L_tab_a:')
    g('s_mov_b32 s24, s12'); g('s_mov_b32 s25, s13'); g('s_mov_b32 s26, 2048')
    g(f'buffer_load_dwordx4 v2, s[24:27], 0 offen lds')
    g(f'buffer_load_dwordx4 v2, s[24:27], 0 offen offset:1024 lds')
    g('L_tab_done:')
    XA = [2, 3, 4, 5]; XB = [6, 7, 8, 9]; WA = 10
    g('v_and_b32 v11, 31, v0'); g('v_lshrrev_b32 v12, 5, v0')
    g('s_lshl_b32 s48, s3, 6')
    g('v_add_u32 v13, s48, v11'); g('v_lshlrev_b32 v13, 7, v13')
    g('v_lshrrev_b32 v14, 1, v0'); g('v_and_b32 v14, 7, v14')
    for kk in range(4):
        g(f'v_add_u32 v15, {2 * kk}, v12'); g('v_xor_b32 v15, v15, v14'); g('v_lshlrev_b32 v15, 4, v15')
        g(f'v_add_u32 v{XA[kk]}, v13, v15'); g(f'v_add_u32 v{XB[kk]}, 0x10000, v{XA[kk]}')
    g('v_lshrrev_b32 v15, 4, v11'); g('v_mul_u32_u24 v15, 12, v15'); g('v_xor_b32 v15, v15, v11')
    g('v_lshlrev_b32 v15, 4, v15'); g('v_lshlrev_b32 v14, 11, v12'); g('v_add_u32 v15, v15, v14')
    g(f'v_add_u32 v{WA}, {LDS_W}, v15')
    g('s_lshl_b32 s48, s28, 8'); g('s_lshl_b32 s49, s3, 6'); g('s_add_u32 s48, s48, s49')
    g(f's_mul_i32 s48, s48, {OROW}'); g('s_lshl_b32 s49, s29, 8'); g('s_add_u32 s48, s48, s49')
    g('s_add_u32 s52, s14, s48'); g('s_addc_u32 s53, s15, 0'); g(f's_sub_u32 s54, {M * OROW}, s48'); g('s_mov_b32 s55, 0x20000')
    g('v_lshrrev_b32 v11, 4, v0'); g('v_and_b32 v11, 1, v11'); g('v_lshlrev_b32 v14, 2, v12'); g('v_add_u32 v11, v11, v14')
    g(f'v_mul_u32_u24 v11, {OROW}, v11'); g('v_and_b32 v14, 15, v0'); g('v_lshlrev_b32 v14, 4, v14'); g('v_add_u32 v11, v11, v14')
    OV = 11
    g('s_waitcnt vmcnt(0)')
    g('s_barrier')
    g('s_barrier')
    if stamps: g('s_memtime s[66:67]')
    FR = [16, 40]
    def acc(mt, t): return 128 + (mt * 4 + t) * 16
    def reads(s, kk, fs):
        b = FR[fs]; slot = s % 4
        xr = (XA if slot < 2 else XB)[kk]; xo = (slot & 1) * 32768
        wo = (s & 1) * 16384 + kk * 4096
        R = {}
        for mt in range(2): R['X%d' % mt] = f'ds_read_b128 v[{b + 4 * mt}:{b + 4 * mt + 3}], v{xr} offset:{xo + mt * 4096}'
        for t in range(4): R['W%d' % t] = f'ds_read_b128 v[{b + 8 + 4 * t}:{b + 8 + 4 * t + 3}], v{WA} offset:{wo + t * 512}'
        return R
    R = reads(0, 0, 0)
    for k_ in ('X0', 'W0', 'W1', 'X1', 'W2', 'W3'): g(R[k_])
    order = [(0, 0), (0, 1), (1, 0), (1, 1), (0, 2), (1, 2), (0, 3), (1, 3)]
    for s in range(NS):
        for kk in range(4):
            fs = kk & 1; b = FR[fs]
            g('s_waitcnt lgkmcnt(0)')
            if kk == 3 and s < NS - 1: g('s_barrier')
            nxt = None
            if kk < 3: nxt = reads(s, kk + 1, fs ^ 1)
            elif s < NS - 1: nxt = reads(s + 1, 0, fs ^ 1)
            after = {0: ('X0', 'W0'), 1: ('W1', 'X1'), 2: ('W2', 'W3')}
            for i, (mt, t) in enumerate(order):
                a = acc(mt, t)
                c = '0' if (s == 0 and kk == 0) else f'v[{a}:{a + 15}]'
                g(f'v_mfma_f32_32x32x16_bf16 v[{a}:{a + 15}], v[{b + 4 * mt}:{b + 4 * mt + 3}], v[{b + 8 + 4 * t}:{b + 8 + 4 * t + 3}], {c}')
                if nxt and i in after:
                    for k_ in after[i]: g(nxt[k_])
    if stamps: g('s_memtime s[68:69]')
    g('s_nop 15'); g('s_nop 3')
    n_st = 0
    for mt in range(2):
        for a_ in range(4):
            for b_ in range(2):
                r = 4 * a_ + 2 * b_
                T = 64 + 4 * (n_st % 8)
                for rr, off in ((r, 0), (r + 1, 2)):
                    g(f'v_cvt_pk_bf16_f32 v{T + off}, v{acc(mt, 0) + rr}, v{acc(mt, 1) + rr}')
                    g(f'v_cvt_pk_bf16_f32 v{T + off + 1}, v{acc(mt, 2) + rr}, v{acc(mt, 3) + rr}')
                g(f's_mov_b32 s48, {(32 * mt + 8 * a_ + 2 * b_) * OROW}')
                g('s_nop 0')
                g(f'v_permlane16_swap_b32 v{T}, v{T + 2}')
                g(f'v_permlane16_swap_b32 v{T + 1}, v{T + 3}')
                g(f'buffer_store_dwordx4 v[{T}:{T + 3}], v{OV}, s[52:55], s48 offen {store_flags}')
                n_st += 1
    if stamps:
        g('s_waitcnt vmcnt(0)')
        g('s_memtime s[70:71]')
        g('s_memrealtime s[72:73]')
        g('s_branch L_stamp')
    g('s_endpgm')

    g('L_prod:')
    if pprio: g(f's_setprio {pprio}')
    g('s_sub_u32 s3, s3, 4')
    VW, VAE, VAO, VWW = 1, 2, 3, 4
    g('v_and_b32 v5, 31, v0'); g('v_lshrrev_b32 v6, 5, v0')
    g('s_lshl_b32 s48, s3, 1'); g('v_add_u32 v7, s48, v6')
    g(f'v_mul_u32_u24 v{VW}, {8 * WROW}, v7'); g('v_lshlrev_b32 v8, 4, v5'); g(f'v_add_u32 v{VW}, v{VW}, v8')
    g('v_lshrrev_b32 v8, 3, v0'); g('v_lshlrev_b32 v8, 11, v8'); g('v_and_b32 v9, 7, v0'); g('v_lshrrev_b32 v10, 4, v0')
    g('v_xor_b32 v9, v9, v10'); g('v_lshlrev_b32 v9, 4, v9'); g(f'v_add_u32 v{VAE}, v8, v9'); g(f'v_xor_b32 v{VAO}, 64, v{VAE}')
    for j in range(8): g(f's_mov_b32 s{32 + j}, {j * WROW}')
    for q in range(8): g(f's_mov_b32 s{40 + q}, {q * 16384 - (q & 3) * 1024}')
    g('s_lshl_b32 s56, s3, 13')
    g('s_mov_b32 s19, 0x20000'); g('s_mov_b32 s23, 0x20000')
    g('s_lshl_b32 s48, s28, 8'); g('s_lshl_b32 s49, s3, 6'); g('s_add_u32 s48, s48, s49'); g('s_lshl_b32 s48, s48, 11')
    g('s_lshl_b32 s49, s29, 9')
    g('s_waitcnt lgkmcnt(0)')
    g('s_add_u32 s16, s4, s48'); g('s_addc_u32 s17, s5, 0'); g(f's_sub_u32 s18, {M * K * 2}, s48')
    g('s_add_u32 s20, s6, s49'); g('s_addc_u32 s21, s7, 0'); g(f's_sub_u32 s22, {K * WROW}, s49')
    vm = VM(g)
    QB = 72
    def qreg(s, j): return QB + 32 * (s % D) + 4 * j
    wstate = {'next': 0}; astate = {'next': 0}
    def w_adv(s):
        assert wstate['next'] == s
        if s > 0:
            g(f's_add_u32 s20, s20, {64 * WROW}'); g('s_addc_u32 s21, s21, 0'); g(f's_sub_u32 s22, s22, {64 * WROW}')
        wstate['next'] = s + 1
    def w_load(s, j):
        r = qreg(s, j)
        vm.issue(f'buffer_load_dwordx4 v[{r}:{r + 3}], v{VW}, s[20:23], s{32 + j} offen {wload_flags}', ('W', s))
    def a_adv(s):
        assert astate['next'] == s
        if s > 0:
            g('s_add_u32 s16, s16, 128'); g('s_addc_u32 s17, s17, 0'); g('s_sub_u32 s18, s18, 128')
        astate['next'] = s + 1
    def a_m0(s, half):
        g(f's_add_u32 m0, s56, {(s % 4) * 32768 + half * 4096}')
    def a_load(s, q):
        v = VAO if q & 1 else VAE
        vm.issue(f'buffer_load_dwordx4 v{v}, s[16:19], s{40 + q} offen offset:{(q & 3) * 1024} {aload_flags} lds', ('A', s))
    def a_all(s):
        a_adv(s)
        for q in range(8):
            if q % 4 == 0:
                a_m0(s, q // 4); g('s_nop 0')
            a_load(s, q)
    for s in range(min(D, 4)):
        w_adv(s)
        for j in range(8): w_load(s, j)
        if s < 3: a_all(s)
    g('v_lshrrev_b32 v8, 1, v5'); g('v_and_b32 v9, 1, v5'); g('v_lshlrev_b32 v10, 4, v9'); g('v_add_u32 v8, v8, v10')
    g('v_mul_u32_u24 v9, 12, v9'); g('v_xor_b32 v8, v8, v9'); g('v_lshlrev_b32 v8, 4, v8')
    g('v_lshlrev_b32 v9, 11, v7'); g('v_add_u32 v8, v8, v9'); g(f'v_add_u32 v{VWW}, {LDS_W}, v8')
    g('v_lshlrev_b32 v8, 3, v5'); g(f'v_add_u32 v8, {LDS_T}, v8')
    g('v_lshrrev_b32 v9, 3, v0'); g('v_and_b32 v9, 1, v9'); g('v_lshlrev_b32 v9, 6, v9'); g('v_lshlrev_b32 v10, 3, v7')
    g('v_add_u32 v9, v9, v10'); g('v_and_b32 v10, 7, v0'); g('v_add_u32 v9, v9, v10'); g('v_lshlrev_b32 v9, 1, v9')
    g(f'v_add_u32 v9, {LDS_T + 4096}, v9')
    g('s_barrier')
    SZ = 40; AR = 32; S0 = 8; C0 = 12; P0 = 16
    for gi in range(8):
        g(f'ds_read_b64 v[{SZ + 4 * gi}:{SZ + 4 * gi + 1}], v8 offset:{gi * 256}')
        g(f'ds_read_b64 v[{SZ + 4 * gi + 2}:{SZ + 4 * gi + 3}], v8 offset:{2048 + gi * 256}')
        if gi == 3: g('s_waitcnt lgkmcnt(0)')
    g('s_waitcnt lgkmcnt(0)')
    for q in range(8): g(f'ds_read_u16 v{AR + q}, v9 offset:{256 * q}')
    g('s_waitcnt lgkmcnt(0)')
    for q in range(8): g(f'v_lshlrev_b32 v{AR + q}, 16, v{AR + q}')
    def group_consts(gi):
        r = SZ + 4 * gi
        for h in range(2):
            g(f'v_lshlrev_b32 v{S0 + 2 * h}, 16, v{r + h}'); g(f'v_and_b32 v{S0 + 2 * h + 1}, 0xffff0000, v{r + h}')
            g(f'v_lshlrev_b32 v{C0 + 2 * h}, 16, v{r + 2 + h}'); g(f'v_and_b32 v{C0 + 2 * h + 1}, 0xffff0000, v{r + 2 + h}')
        for t in range(4): g(f'v_mul_f32_e64 v{C0 + t}, -v{C0 + t}, v{S0 + t}')
    def dequant(s, extra):
        if s % 2 == 0: group_consts(s // 2)
        vm.wait(('W', s))
        nxt = s + D
        if nxt < NS: w_adv(nxt)
        ex = list(extra)
        for jp in range(4):
            rows = (2 * jp, 2 * jp + 1)
            regs = [(j, t, qreg(s, j) + t) for j in rows for t in range(4)]
            for j, t, r in regs: g(f'v_cvt_f32_i32 v{r}, v{r}')
            if ex: ex.pop(0)()
            for j, t, r in regs: g(f'v_fma_f32 v{r}, v{r}, v{S0 + t}, v{C0 + t}')
            if ex: ex.pop(0)()
            for j, t, r in regs:
                g(f'v_mul_f32_dpp v{r}, v{AR + (s >> 1)}, v{r} row_newbcast:{8 * (s & 1) + j} row_mask:0xf bank_mask:0xf')
            for t in range(4):
                g(f'v_cvt_pk_bf16_f32 v{P0 + 4 * t + jp}, v{qreg(s, rows[0]) + t}, v{qreg(s, rows[1]) + t}')
            if nxt < NS:
                for j in rows: w_load(nxt, j)
        while ex: ex.pop(0)()
        for t in range(4):
            g(f'ds_write_b128 v{VWW}, v[{P0 + 4 * t}:{P0 + 4 * t + 3}] offset:{(s & 1) * 16384 + t * 512}')
    dequant(0, [])
    vm.wait(('A', 0)); g('s_waitcnt lgkmcnt(0)'); g('s_barrier')
    for i in range(NS - 1):
        ex = []
        sa = i + 3
        if sa < NS:
            for q in range(8):
                def f(q=q):
                    if q == 0: a_adv(sa)
                    if q % 4 == 0:
                        a_m0(sa, q // 4); g('s_nop 0')
                    a_load(sa, q)
                ex.append(f)
        dequant(i + 1, ex)
        vm.wait(('A', i + 1)); g('s_waitcnt lgkmcnt(0)'); g('s_barrier')
    if stamps:
        g('s_memtime s[66:67]'); g('s_memtime s[68:69]'); g('s_memtime s[70:71]'); g('s_memrealtime s[72:73]')
        g('s_add_u32 s3, s3, 4')
        g('L_stamp:')
        g('s_waitcnt lgkmcnt(0)')
        g('s_mov_b32 s76, s60'); g('s_mov_b32 s77, s61'); g('s_mov_b32 s78, 0x10000000'); g('s_mov_b32 s79, 0x20000')
        g('s_lshl_b32 s48, s2, 3'); g('s_add_u32 s48, s48, s3'); g('s_lshl_b32 s48, s48, 5')
        for i, r in enumerate((62, 64, 66, 68, 70, 72)): g(f'v_mov_b32 v{16 + i}, s{r}')
        g('s_getreg_b32 s49, hwreg(HW_REG_XCC_ID)'); g('v_mov_b32 v22, s49'); g('v_mov_b32 v23, s63')
        g('v_mov_b32 v24, s48')
        g('v_cmp_eq_u32 vcc, 0, v0'); g('s_and_saveexec_b64 s[74:75], vcc'); g('s_cbranch_execz L_end')
        g('buffer_store_dwordx4 v[16:19], v24, s[76:79], 0 offen')
        g('buffer_store_dwordx4 v[20:23], v24, s[76:79], 0 offen offset:16')
    g('L_end:')
    g('s_endpgm')
    g('.section .rodata,"a"'); g('.p2align 6'); g(f'.amdhsa_kernel {KN}')
    g('  .amdhsa_next_free_vgpr 256'); g('  .amdhsa_next_free_sgpr 96'); g('  .amdhsa_accum_offset 256')
    g('  .amdhsa_group_segment_fixed_size 0'); g('  .amdhsa_kernarg_size 64'); g('  .amdhsa_user_sgpr_count 2')
    g('  .amdhsa_user_sgpr_kernarg_segment_ptr 1'); g('  .amdhsa_system_sgpr_workgroup_id_x 1')
    g('  .amdhsa_float_denorm_mode_32 3')
    g('.end_amdhsa_kernel')
    return g.text()

if __name__ == '__main__':
    import sys
    src = gen()
    out = sys.argv[1] if len(sys.argv) > 1 else 'k1.s'
    hdr = open('standalone__weight_only_int_omniquant__prompt.s.ref').read().split('\n')
    hdr = [h for h in hdr if h.startswith(';') and '@launch' not in h and 'Override launch' not in h and 'grid=ceil' not in h][:9]
    open(out, 'w').write('\n'.join(hdr) + '\n' + src)
    print('wrote', out, len(src))
```

```python
def coop(pre=2, dist=4, w_lim=8, x_lim=4, a_post=2):
    rounds = []
    for i in range(pre):
        wt = {}
        wt[0] = 2 * i; wt[1] = 2 * i + 1
        wt[2] = min(2 * i, x_lim - 1); wt[3] = min(2 * i + 1, x_lim - 1)
        rounds.append(wt)
    stage = {}
    for s in range(16):
        tau = s + dist
        if 2 * pre <= tau < w_lim: stage[(s, 1)] = {0: tau}
    return dict(pre=rounds, stage=stage, a_post=a_post, pre_wait=pre - 1)

G1 = [[1, 0, 2, 3, 4, 6, 5, 7], [0, 1, 2, 4, 3, 5, 6, 7], [1, 0, 3, 2, 4, 5, 7, 6], [1, 2, 0, 3, 5, 4, 6, 7]]
G2 = [[1, 0, 4, 3, 2, 5, 6, 7], [1, 0, 2, 3, 4, 7, 5, 6], [0, 3, 1, 2, 6, 4, 5, 7], [1, 2, 0, 5, 3, 4, 6, 7]]
G4 = [[3, 0, 5, 1, 2, 4, 6, 7], [2, 0, 1, 6, 3, 4, 5, 7], [1, 0, 2, 3, 7, 4, 5, 6], [0, 4, 1, 2, 3, 5, 6, 7]]
G0 = [[0, 2, 1, 3, 4, 5, 6, 7], [0, 1, 3, 2, 4, 5, 7, 6], [0, 2, 1, 4, 3, 6, 5, 7], [0, 1, 2, 3, 5, 4, 6, 7]]
GX = [[t ^ r for t in range(8)] for r in range(4)]

def from_groups(G): return [[2 * g + h for g in p for h in range(2)] for p in G]
A1 = [[1, 0, 2, 4, 3, 5, 6, 8, 7, 9, 10, 12, 11, 13, 14, 15], [0, 1, 3, 2, 5, 4, 6, 7, 8, 10, 9, 11, 13, 12, 14, 15],
      [0, 2, 1, 3, 4, 5, 7, 6, 9, 8, 10, 11, 12, 14, 13, 15], [1, 0, 2, 3, 4, 6, 5, 7, 8, 9, 11, 10, 12, 13, 15, 14]]
A2 = [[1, 2, 0, 3, 4, 5, 8, 6, 7, 11, 9, 10, 14, 12, 13, 15], [0, 2, 1, 3, 6, 4, 5, 9, 7, 8, 10, 11, 12, 15, 13, 14],
      [1, 3, 4, 0, 2, 7, 5, 6, 8, 9, 12, 10, 11, 13, 14, 15], [0, 3, 1, 5, 2, 4, 6, 7, 10, 8, 9, 13, 11, 12, 14, 15]]
SG1 = from_groups(G1)
ID = [list(range(16))] * 4

def canon(P):
    n = len(P[0]); first = {}
    for t in range(n):
        for p in P: first.setdefault(p[t], len(first))
    return [[first[s] for s in p] for p in P]
B2 = canon([[6,11,0,4,13,15,1,5,8,14,3,7,9,2,10,12],[0,6,13,11,5,4,8,15,1,14,3,7,10,12,2,9],[0,13,6,11,1,4,5,14,3,15,8,2,10,7,9,12],[13,11,1,0,6,4,5,15,8,7,10,3,14,2,9,12]])
B3 = canon([[14,5,2,11,10,3,12,1,9,0,4,15,7,6,8,13],[3,2,5,14,10,12,0,11,9,6,4,13,15,1,8,7],[2,5,12,14,10,4,11,3,15,0,1,9,6,8,13,7],[5,10,14,2,9,12,11,3,4,0,8,1,15,6,13,7]])
B4 = canon([[15,6,10,7,3,0,11,12,5,8,9,4,13,14,1,2],[15,0,12,7,11,6,10,14,13,5,4,9,3,8,1,2],[11,10,0,12,15,6,9,7,3,5,4,2,14,13,8,1],[10,5,0,6,15,11,4,12,3,7,1,14,13,8,9,2]])
SG2 = from_groups(G2)
SH2 = from_groups(canon([[7,4,3,1,2,0,5,6],[3,4,0,7,1,5,2,6],[1,4,3,7,0,6,5,2],[1,4,3,5,7,0,2,6]]))
SH3 = from_groups(canon([[7,2,5,6,3,1,0,4],[2,6,7,5,4,0,3,1],[6,3,5,0,7,2,4,1],[5,2,6,7,3,0,4,1]]))

def canon_g(P):
    first = {}
    for t in range(16):
        for p in P: first.setdefault(p[t] >> 1, len(first))
    return [[2 * first[s >> 1] + (s & 1) for s in p] for p in P]
H5 = canon_g([[5,4,12,13,8,9,15,14,2,3,7,6,11,10,0,1],[12,13,4,5,8,9,3,2,11,10,14,15,1,0,6,7],[4,5,12,13,3,2,8,9,15,14,6,7,10,11,1,0],[13,12,8,9,4,5,3,2,15,14,11,10,0,1,6,7]])
H6 = canon_g([[13,12,2,3,8,9,15,14,10,11,4,5,6,7,0,1],[12,13,9,8,15,14,3,2,10,11,6,7,5,4,0,1],[9,8,13,12,2,3,15,14,4,5,10,11,6,7,0,1],[12,13,9,8,2,3,10,11,14,15,4,5,0,1,7,6]])

def swap_at(P, spec):
    Q = [p[:] for p in P]
    for r, i in spec: Q[r][2 * i], Q[r][2 * i + 1] = Q[r][2 * i + 1], Q[r][2 * i]
    return Q
S1 = swap_at(SG1, [(0, 0)])
S2 = swap_at(SG1, [(2, 0)])
SG0 = from_groups(G0)
S3 = swap_at(SG0, [(1, 0), (3, 0)])
S4 = swap_at(SG0, [(1, 0), (3, 0), (2, 1), (3, 1)])

K1 = [[0, 1, 2, 3, 4, 6, 5, 7], [1, 0, 2, 4, 3, 5, 6, 7], [0, 1, 3, 2, 4, 5, 7, 6], [0, 2, 1, 3, 5, 4, 6, 7]]
KID = [list(range(8))] * 4
```

```python
KN = 'standalone__weight_only_int_omniquant__prompt_kernel'
M, N, K = 2048, 3584, 1024
NS = 16
NWG = 224
WROW = N * 4
OROW = N * 2
LDS_W = 131072
LDS_T = LDS_W + 16384

class G:
    def __init__(self): self.L = []
    def __call__(self, s): self.L.append(s)
    def text(self): return '\n'.join(self.L) + '\n'

class VM:
    def __init__(self, g): self.g = g; self.q = []
    def issue(self, ins, tag):
        self.g(ins); self.q.append(tag)
        assert len(self.q) <= 63, len(self.q)
    def wait(self, tag):
        idx = [i for i, t in enumerate(self.q) if t == tag]
        if not idx: return
        n = len(self.q) - 1 - idx[-1]
        self.g(f's_waitcnt vmcnt({n})')
        self.q = self.q[idx[-1] + 1:]

def interleave(body, extra):
    n = len(extra)
    if not n:
        for b in body: b()
        return
    step = len(body) / n; k = 0
    for i, b in enumerate(body):
        b()
        while k < n and (k + 0.5) * step <= i + 1:
            extra[k](); k += 1
    while k < n:
        extra[k](); k += 1

def gen(sperm, sx=0, denorm=True, store_flags='sc1', cprio=1, pprio=0, helpers=None, stamps=False, mark=None,
        a_post=2, la=13, w_pre=2, wla=2, w0_loads=0, snake=True, wload_flags='', aload_flags='', pad=0, abl='', coop=0, coop_from=2, coop_step=1, coop_pre='post', gstatic=True, lazy=False, w_mid=0, ep2=False, xmap=0, hx_only=False):
    g = G()
    def tl(name):
        if mark and name == mark[0]: g('s_memtime s[66:67]')
        if mark and name == mark[1]: g('s_memtime s[68:69]')
    NH = 32 if helpers else 0
    g(f'; @launch grid=({NWG + NH},1,1) block=(512,1,1) lds=163840')
    g('.amdgcn_target "amdgcn-amd-amdhsa--gfx950"')
    g('.text'); g(f'.globl {KN}'); g('.p2align 8'); g(f'.type {KN},@function'); g(f'{KN}:')
    g('s_load_dwordx8 s[4:11], s[0:1], 0')
    g('s_load_dwordx4 s[12:15], s[0:1], 32')
    if stamps:
        g(f's_load_dwordx2 s[60:61], s[0:1], {48 if stamps == "dbg" else 56}')
        g('s_memrealtime s[62:63]')
        g('s_memtime s[64:65]')
    if pad: g('s_memrealtime s[80:81]')
    g(f's_cmp_ge_u32 s2, {NWG + NH}')
    g('s_cbranch_scc1 L_end')
    g('v_lshrrev_b32 v1, 6, v0')
    g('v_and_b32 v0, 63, v0')
    g('s_and_b32 s30, s2, 7')
    g('v_readfirstlane_b32 s3, v1')
    if helpers:
        g(f's_cmp_lt_u32 s2, {NH}'); g('s_cbranch_scc1 L_help')
        g(f's_sub_u32 s31, s2, {NH}'); g('s_lshr_b32 s31, s31, 3')
    else:
        g('s_lshr_b32 s31, s2, 3')
    if xmap == 1:
        g('s_lshr_b32 s48, s30, 2'); g('s_and_b32 s30, s30, 3'); g('s_lshl_b32 s30, s30, 1'); g('s_or_b32 s30, s30, s48')
    elif xmap == 2:
        g('s_lshr_b32 s48, s30, 2'); g('s_lshl_b32 s49, s48, 1'); g('s_xor_b32 s30, s30, s49'); g('s_and_b32 s30, s30, 3'); g('s_lshl_b32 s30, s30, 1'); g('s_or_b32 s30, s30, s48')
    g('s_and_b32 s28, s30, 1'); g('s_lshl_b32 s28, s28, 2'); g('s_and_b32 s48, s31, 3'); g('s_add_u32 s28, s28, s48')
    g('s_lshr_b32 s29, s30, 1'); g('s_mul_i32 s29, s29, 7'); g('s_lshr_b32 s49, s31, 2'); g('s_add_u32 s29, s29, s49')
    g('s_add_u32 s48, s48, s49'); g('s_and_b32 s48, s48, 3')
    words = [sum(p[i] << (4 * i) for i in range(16)) for p in sperm]
    g(f's_mov_b32 s96, {words[0] & 0xffffffff}'); g(f's_mov_b32 s97, {words[0] >> 32}')
    for r in range(1, 4):
        g(f's_cmp_eq_u32 s48, {r}'); g(f's_cselect_b32 s96, {words[r] & 0xffffffff}, s96'); g(f's_cselect_b32 s97, {words[r] >> 32}, s97')
    if sx:
        g('s_lshr_b32 s48, s30, 1'); g('s_xor_b32 s48, s48, s30'); g('s_and_b32 s48, s48, 1'); g(f's_mul_i32 s48, s48, {sx * 0x11111111}')
        g('s_xor_b32 s96, s96, s48'); g('s_xor_b32 s97, s97, s48')
    grouped = gstatic and all(p[2 * i] % 2 == 0 and p[2 * i + 1] == p[2 * i] + 1 for p in sperm for i in range(8)) and sx % 2 == 0
    def sigma(dst, t):
        g(f's_bfe_u32 {dst}, s{96 + t // 8}, {(4 * (t % 8)) | (4 << 16)}')
    g('s_cmp_ge_u32 s3, 4')
    g('s_cbranch_scc1 L_prod')

    if cprio: g(f's_setprio {cprio}')
    vm = VM(g)
    VAE, VAO = 12, 13
    if grouped:
        g('v_lshrrev_b32 v1, 4, v0'); g('v_lshlrev_b32 v1, 3, v1'); g('v_add_u32 v1, 1, v1'); g('v_mov_b32 v2, s96'); g('v_mov_b32 v5, s97')
        g('v_lshrrev_b32 v2, v1, v2'); g('v_lshrrev_b32 v5, v1, v5'); g('v_and_b32 v1, 7, v2'); g('v_and_b32 v5, 7, v5')
        g(f'v_mul_u32_u24 v1, {OROW}, v1'); g(f'v_mul_u32_u24 v5, {OROW}, v5'); g('v_and_b32 v2, 15, v0'); g('v_lshlrev_b32 v2, 4, v2')
        g('v_add_u32 v1, v1, v2'); g('v_add_u32 v5, v5, v2')
    else:
        g('v_lshrrev_b32 v1, 4, v0'); g(f'v_mul_u32_u24 v1, {OROW}, v1'); g('v_and_b32 v2, 15, v0'); g('v_lshlrev_b32 v2, 4, v2'); g('v_add_u32 v1, v1, v2')
    g('v_lshrrev_b32 v3, 3, v0'); g('v_lshlrev_b32 v3, 2, v3'); g('v_mov_b32 v2, s96'); g('v_mov_b32 v4, s97')
    g('v_lshrrev_b32 v2, v3, v2'); g('v_lshrrev_b32 v4, v3, v4'); g('v_and_b32 v2, 15, v2'); g('v_and_b32 v4, 15, v4')
    g('v_lshlrev_b32 v2, 7, v2'); g('v_lshlrev_b32 v4, 7, v4'); g('v_and_b32 v3, 7, v0'); g('v_lshlrev_b32 v3, 4, v3')
    g('v_add_u32 v2, v2, v3'); g('v_add_u32 v4, v4, v3')
    g('v_lshrrev_b32 v8, 3, v0'); g('v_lshlrev_b32 v8, 11, v8'); g('v_and_b32 v9, 7, v0'); g('v_lshrrev_b32 v10, 4, v0')
    g('v_xor_b32 v9, v9, v10'); g('v_lshlrev_b32 v9, 4, v9'); g(f'v_add_u32 v{VAE}, v8, v9'); g(f'v_xor_b32 v{VAO}, 64, v{VAE}')
    for q in range(8): g(f's_mov_b32 s{40 + q}, {q * 16384 - (q & 3) * 1024}')
    g('s_lshl_b32 s56, s3, 13')
    g('s_lshl_b32 s51, s29, 8')
    g('s_lshl_b32 s49, s3, 11'); g(f's_add_u32 s49, s49, {LDS_T}')
    g('s_mov_b32 m0, s49')
    g('s_mov_b32 s27, 0x20000'); g('s_mov_b32 s19, 0x20000')
    g('s_lshl_b32 s48, s28, 8'); g('s_lshl_b32 s49, s3, 6'); g('s_add_u32 s57, s48, s49')
    g('s_lshl_b32 s48, s57, 11')
    g('s_waitcnt lgkmcnt(0)')
    tl('karg')
    g('s_add_u32 s86, s4, s48'); g('s_addc_u32 s87, s5, 0'); g(f's_sub_u32 s88, {M * K * 2}, s48')
    g('s_cmp_eq_u32 s3, 3'); g('s_cbranch_scc1 L_tab_done')
    g('s_cmp_eq_u32 s3, 2'); g('s_cbranch_scc1 L_tab_a')
    g('s_cmp_eq_u32 s3, 0')
    g('s_cselect_b32 s24, s8, s10'); g('s_cselect_b32 s25, s9, s11')
    g('s_add_u32 s24, s24, s51'); g('s_addc_u32 s25, s25, 0')
    g(f's_sub_u32 s26, {8 * OROW}, s51')
    g('buffer_load_dwordx4 v1, s[24:27], 0 offen lds')
    if grouped:
        g('s_add_u32 m0, m0, 1024'); g('s_nop 0')
        g('buffer_load_dwordx4 v5, s[24:27], 0 offen lds')
    else:
        g(f's_mov_b32 s50, {4 * OROW - 1024}')
        g('buffer_load_dwordx4 v1, s[24:27], s50 offen offset:1024 lds')
    g('s_branch L_tab_done')
    g('L_tab_a:')
    g('s_mov_b32 s24, s12'); g('s_mov_b32 s25, s13'); g('s_mov_b32 s26, 2048')
    g('buffer_load_dwordx4 v2, s[24:27], 0 offen lds')
    g('s_add_u32 m0, m0, 1024'); g('s_nop 0')
    g('buffer_load_dwordx4 v4, s[24:27], 0 offen lds')
    g('L_tab_done:')
    a_next = [0]
    def a_piece(s, q):
        if q == 0:
            assert a_next[0] == s; a_next[0] = s + 1
            sigma('s89', s); g('s_lshl_b32 s90, s89, 7')
            g('s_add_u32 s16, s86, s90'); g('s_addc_u32 s17, s87, 0'); g('s_sub_u32 s18, s88, s90')
        if q % 4 == 0:
            g(f's_add_u32 m0, s56, {(s % 4) * 32768 + (q // 4) * 4096}'); g('s_nop 0')
        if 'A' in abl and s >= 4: return
        v = VAO if q & 1 else VAE
        vm.issue(f'buffer_load_dwordx4 v{v}, s[16:19], s{40 + q} offen offset:{(q & 3) * 1024} {aload_flags} lds', ('A', s))
    PFV, PFD = 15, 14
    n_pf = [0]
    if coop:
        g('s_and_b32 s48, s28, 3'); g('s_lshl_b32 s48, s48, 4')
        g('v_lshrrev_b32 v20, 2, v0'); g('v_add_u32 v20, s48, v20'); g(f'v_mul_u32_u24 v20, {WROW}, v20')
        g('v_and_b32 v21, 3, v0'); g('v_lshlrev_b32 v21, 7, v21'); g('v_add_u32 v20, v20, v21')
        g('s_lshl_b32 s48, s29, 9'); g('v_add_u32 v20, s48, v20')
        g('s_lshr_b32 s48, s31, 2'); g('s_mul_i32 s48, s48, 37')
        g('v_min_u32 v21, 36, v0'); g('v_add_u32 v21, s48, v21'); g('v_min_u32 v21, 255, v21')
        g('s_lshl_b32 s48, s28, 8'); g('v_add_u32 v21, s48, v21'); g('v_lshlrev_b32 v21, 11, v21')
        g(f's_mov_b32 s94, {M * K * 2}'); g('s_movk_i32 s91, 128')
        g('s_cmp_eq_u32 s3, 0')
        g('s_cselect_b32 s92, s6, s4'); g('s_cselect_b32 s93, s7, s5'); g(f's_cselect_b32 s94, {K * WROW}, s94')
        g(f's_cselect_b32 s91, {64 * WROW}, s91'); g('s_mov_b32 s95, 0x20000')
        g('s_cselect_b64 vcc, -1, 0')
        g(f'v_cndmask_b32 v{PFV}, v21, v20, vcc')
    def touch(t):
        n = n_pf[0]; n_pf[0] += 1
        g('s_cmp_ge_u32 s3, 2'); g(f's_cbranch_scc1 L_pf{n}')
        sigma('s48', t); g('s_mul_i32 s48, s48, s91')
        g('s_cmp_eq_u32 s3, 1'); g('s_cselect_b32 exec_hi, 0x1f, -1')
        g(f'buffer_load_dword v{PFD}, v{PFV}, s[92:95], s48 offen')
        g('s_mov_b32 exec_hi, -1')
        g(f'L_pf{n}:')
    XA = [2, 3, 4, 5]; XB = [6, 7, 8, 9]; WA = 10; OV = 11
    g('v_and_b32 v19, 31, v0'); g('v_lshrrev_b32 v22, 5, v0')
    g('s_lshl_b32 s48, s3, 6')
    g('v_add_u32 v16, s48, v19'); g('v_lshlrev_b32 v16, 7, v16')
    g('v_lshrrev_b32 v17, 1, v0'); g('v_and_b32 v17, 7, v17')
    for kk in range(4):
        g(f'v_add_u32 v18, {2 * kk}, v22'); g('v_xor_b32 v18, v18, v17'); g('v_lshlrev_b32 v18, 4, v18')
        g(f'v_add_u32 v{XA[kk]}, v16, v18'); g(f'v_add_u32 v{XB[kk]}, 0x10000, v{XA[kk]}')
    g('v_lshrrev_b32 v18, 4, v19'); g('v_mul_u32_u24 v18, 12, v18'); g('v_xor_b32 v18, v18, v19')
    g('v_lshlrev_b32 v18, 4, v18'); g('v_lshlrev_b32 v17, 11, v22'); g('v_add_u32 v18, v18, v17')
    g(f'v_add_u32 v{WA}, {LDS_W}, v18')
    g(f's_mul_i32 s48, s57, {OROW}'); g('s_add_u32 s48, s48, s51')
    g('s_add_u32 s52, s14, s48'); g('s_addc_u32 s53, s15, 0'); g(f's_sub_u32 s54, {M * OROW}, s48'); g('s_mov_b32 s55, 0x20000')
    if ep2:
        for i in range(8): g(f's_mov_b32 s{32 + i}, {(8 * (i >> 1) + 2 * (i & 1)) * OROW}')
    g(f'v_lshrrev_b32 v{OV}, 4, v0'); g(f'v_and_b32 v{OV}, 1, v{OV}'); g('v_lshlrev_b32 v17, 2, v22'); g(f'v_add_u32 v{OV}, v{OV}, v17')
    g(f'v_mul_u32_u24 v{OV}, {OROW}, v{OV}'); g('v_and_b32 v17, 15, v0'); g('v_lshlrev_b32 v17, 4, v17'); g(f'v_add_u32 v{OV}, v{OV}, v17')
    g('s_waitcnt vmcnt(0)')
    tl('pretab')
    g('s_barrier')
    tl('ptab')
    for s in range(a_post):
        for q in range(8): a_piece(s, q)
        if coop and coop_pre == 'mid' and s == 0:
            for t in range(coop_from, coop): touch(t)
    if coop and coop_pre == 'post':
        for t in range(coop_from, coop): touch(t)
    a_sched = [(max(4 * s - la, 4 * (s - 4) + 3), s, q) for s in range(a_post, NS) for q in range(8)]
    vm.wait(('A', 0))
    tl('d0')
    g('s_barrier')
    tl('p0')
    if stamps and not mark: g('s_memtime s[66:67]')
    def acc(mt, t): return 128 + (mt * 4 + t) * 16
    def reads(s, kk, b):
        slot = s % 4
        xr = (XA if slot < 2 else XB)[kk]; xo = (slot & 1) * 32768
        wo = (s & 1) * 16384 + kk * 4096
        R = {}
        for mt in range(2): R['X%d' % mt] = f'ds_read_b128 v[{b + 4 * mt}:{b + 4 * mt + 3}], v{xr} offset:{xo + mt * 4096}'
        for t in range(4): R['W%d' % t] = f'ds_read_b128 v[{b + 8 + 4 * t}:{b + 8 + 4 * t + 3}], v{WA} offset:{wo + t * 512}'
        return R
    def mfma(s, kk, mt, t, b):
        if 'M' in abl and not (s == 0 and kk == 0): return
        a = acc(mt, t)
        c = '0' if (s == 0 and kk == 0) else f'v[{a}:{a + 15}]'
        g(f'v_mfma_f32_32x32x16_bf16 v[{a}:{a + 15}], v[{b + 4 * mt}:{b + 4 * mt + 3}], v[{b + 8 + 4 * t}:{b + 8 + 4 * t + 3}], {c}')
    LAST = NS - 1
    def fbase(s, kk):
        if s == LAST: return 16 + 24 * kk
        return 64 if (s == LAST - 1 and kk == 3) else (16, 40)[kk & 1]
    if snake:
        order = [(0, 0), (0, 1), (0, 2), (0, 3), (1, 3), (1, 2), (1, 1), (1, 0)]
        RO = ('X0', 'W0', 'W1', 'W2', 'W3', 'X1')
    else:
        order = [(0, 0), (0, 1), (1, 0), (1, 1), (0, 2), (1, 2), (0, 3), (1, 3)]
        RO = ('X0', 'W0', 'W1', 'X1', 'W2', 'W3')
    after = {0: RO[0:2], 1: RO[2:4], 2: RO[4:6]}
    R = reads(0, 0, fbase(0, 0))
    for k_ in RO: g(R[k_])
    n_st = [0]
    def store_ops2(mt, TB, nT):
        srd = 's[52:55]' if mt == 0 else 's[24:27]'
        grp = []
        for a_ in range(4):
            for b_ in range(2):
                r = 4 * a_ + 2 * b_
                T = TB + 4 * (n_st[0] % nT); n_st[0] += 1
                cv = []
                for rr, off in ((r, 0), (r + 1, 2)):
                    cv.append(lambda T=T, off=off, rr=rr: g(f'v_cvt_pk_bf16_f32 v{T + off}, v{acc(mt, 0) + rr}, v{acc(mt, 1) + rr}'))
                    cv.append(lambda T=T, off=off, rr=rr: g(f'v_cvt_pk_bf16_f32 v{T + off + 1}, v{acc(mt, 2) + rr}, v{acc(mt, 3) + rr}'))
                fin = [lambda T=T: g(f'v_permlane16_swap_b32 v{T}, v{T + 2}'), lambda T=T: g(f'v_permlane16_swap_b32 v{T + 1}, v{T + 3}'),
                       lambda T=T, i=2 * a_ + b_: g(f'buffer_store_dwordx4 v[{T}:{T + 3}], v{OV}, {srd}, s{32 + i} offen {store_flags}')]
                grp.append((cv, fin))
        ops = list(grp[0][0])
        for i in range(1, 8): ops += grp[i][0] + grp[i - 1][1]
        ops.append(lambda: g('s_nop 1'))
        ops += grp[7][1]
        return ops
    def store_ops(mt, TB, nT):
        if ep2: return store_ops2(mt, TB, nT)
        ops = []
        for a_ in range(4):
            for b_ in range(2):
                r = 4 * a_ + 2 * b_
                T = TB + 4 * (n_st[0] % nT); n_st[0] += 1
                for rr, off in ((r, 0), (r + 1, 2)):
                    ops.append(lambda T=T, off=off, rr=rr: g(f'v_cvt_pk_bf16_f32 v{T + off}, v{acc(mt, 0) + rr}, v{acc(mt, 1) + rr}'))
                    ops.append(lambda T=T, off=off, rr=rr: g(f'v_cvt_pk_bf16_f32 v{T + off + 1}, v{acc(mt, 2) + rr}, v{acc(mt, 3) + rr}'))
                ops.append(lambda a_=a_, b_=b_: (g(f's_mov_b32 s48, {(32 * mt + 8 * a_ + 2 * b_) * OROW}'), g('s_nop 0')))
                ops.append(lambda T=T: g(f'v_permlane16_swap_b32 v{T}, v{T + 2}'))
                ops.append(lambda T=T: g(f'v_permlane16_swap_b32 v{T + 1}, v{T + 3}'))
                ops.append(lambda T=T: g(f'buffer_store_dwordx4 v[{T}:{T + 3}], v{OV}, s[52:55], s48 offen {store_flags}'))
        return ops
    for s in range(LAST):
        for kk in range(4):
            b = fbase(s, kk)
            g('s_waitcnt lgkmcnt(0)')
            if kk == 3:
                tl(f'pre{s + 1}')
                assert not any(st_ <= s + 1 for _, st_, _q in a_sched), (s, a_sched[:3])
                vm.wait(('A', s + 1))
                tl(f'd{s + 1}')
                g('s_barrier')
                tl(f'p{s + 1}')
            nxt = reads(s, kk + 1, fbase(s, kk + 1)) if kk < 3 else reads(s + 1, 0, fbase(s + 1, 0))
            for i, (mt, t) in enumerate(order):
                mfma(s, kk, mt, t, b)
                if i in after and 'R' not in abl:
                    for k_ in after[i]: g(nxt[k_])
                if i in (3, 5) and a_sched and a_sched[0][0] <= 4 * s + kk:
                    _, st_, q_ = a_sched.pop(0); a_piece(st_, q_)
                if coop and kk == coop_step and i == 6 and s + coop < NS and s + coop >= coop_from: touch(s + coop)
    assert not a_sched
    if ep2:
        g(f's_add_u32 s24, s52, {32 * OROW}'); g('s_addc_u32 s25, s53, 0'); g(f's_sub_u32 s26, s54, {32 * OROW}'); g('s_mov_b32 s27, 0x20000')
    s = LAST
    TO = ('X0', 'W0', 'W1', 'W2', 'W3', 'X1')
    r1 = reads(s, 1, fbase(s, 1))
    for k_ in TO: g(r1[k_])
    for kk in range(4):
        b = fbase(s, kk)
        g(f's_waitcnt lgkmcnt({6 if kk < 3 else 0})')
        nxt = reads(s, kk + 2, fbase(s, kk + 2)) if kk < 2 else None
        for t in range(4):
            mfma(s, kk, 0, t, b)
            if nxt:
                for k_ in {0: TO[0:2], 1: TO[2:4], 2: TO[4:6], 3: ()}[t]: g(nxt[k_])
    mf = [(lambda kk=kk, t=t: mfma(s, kk, 1, t, fbase(s, kk))) for kk in range(4) for t in range(4)]
    for f in mf[:4]: f()
    g('s_nop 7')
    ops = store_ops(0, 112, 4)
    k = 0; rest = mf[4:]; per = len(ops) / len(rest)
    for i, f in enumerate(rest):
        f()
        while k < len(ops) and k < (i + 1) * per:
            ops[k](); k += 1
    if stamps and not mark: g('s_memtime s[68:69]')
    g('s_nop 15')
    for f in store_ops(1, 16, 8): f()
    if stamps:
        g('s_waitcnt vmcnt(0)'); g('s_memtime s[70:71]'); g('s_memrealtime s[72:73]'); g('s_branch L_stamp')
    if pad:
        g('L_pad:'); g('s_memrealtime s[82:83]'); g('s_waitcnt lgkmcnt(0)'); g('s_sub_u32 s84, s82, s80')
        g(f's_cmp_lt_u32 s84, {pad * 100}'); g('s_cbranch_scc1 L_pad')
    g('s_endpgm')

    g('L_prod:')
    if pprio: g(f's_setprio {pprio}')
    g('s_sub_u32 s3, s3, 4')
    vm = VM(g)
    VW, VWW = 1, 4
    D = 3; QB = 112; CB = 40; AR = 32; S0 = 8; C0 = 12; P0 = 16; SZ = 208
    g('v_and_b32 v5, 31, v0'); g('v_lshrrev_b32 v6, 5, v0')
    g('s_lshl_b32 s48, s3, 1'); g('v_add_u32 v7, s48, v6')
    g(f'v_mul_u32_u24 v{VW}, {8 * WROW}, v7'); g('v_lshlrev_b32 v8, 4, v5'); g(f'v_add_u32 v{VW}, v{VW}, v8')
    for j in range(8): g(f's_mov_b32 s{32 + j}, {j * WROW}')
    g('s_mov_b32 s23, 0x20000')
    g('s_lshl_b32 s49, s29, 9')
    g('s_waitcnt lgkmcnt(0)')
    tl('karg')
    g('s_add_u32 s86, s6, s49'); g('s_addc_u32 s87, s7, 0'); g(f's_sub_u32 s88, {K * WROW}, s49')
    def qreg(s, j): return QB + 32 * (s % D) + 4 * j
    w_next = [0]
    def w_load(s, j):
        if j == 0:
            assert w_next[0] == s; w_next[0] = s + 1
            sigma('s89', s); g(f's_mul_i32 s90, s89, {64 * WROW}')
            g('s_add_u32 s20, s86, s90'); g('s_addc_u32 s21, s87, 0'); g('s_sub_u32 s22, s88, s90')
        if 'W' in abl and s >= 4: return
        r = qreg(s, j)
        vm.issue(f'buffer_load_dwordx4 v[{r}:{r + 3}], v{VW}, s[20:23], s{32 + j} offen {wload_flags}', ('W', s))
    wsched = {}; nxt_ = w_pre + w_mid
    for s in range(NS):
        want = min(s + wla, NS - 1); lst = []
        cap = 2 if s > 0 else w0_loads
        while nxt_ <= want and len(lst) < cap:
            lst.append(nxt_); nxt_ += 1
        assert all(j <= s + D - 1 for j in lst)
        wsched[s] = lst
    assert nxt_ == NS and w_pre + w_mid <= D
    for s in range(w_pre):
        for j in range(8): w_load(s, j)
    g('v_lshrrev_b32 v8, 1, v5'); g('v_and_b32 v9, 1, v5'); g('v_lshlrev_b32 v10, 4, v9'); g('v_add_u32 v8, v8, v10')
    g('v_mul_u32_u24 v9, 12, v9'); g('v_xor_b32 v8, v8, v9'); g('v_lshlrev_b32 v8, 4, v8')
    g('v_lshlrev_b32 v9, 11, v7'); g('v_add_u32 v8, v8, v9'); g(f'v_add_u32 v{VWW}, {LDS_W}, v8')
    g('v_lshlrev_b32 v8, 3, v5'); g(f'v_add_u32 v8, {LDS_T}, v8')
    g('v_lshrrev_b32 v9, 3, v0'); g('v_and_b32 v9, 1, v9'); g('v_lshlrev_b32 v9, 6, v9'); g('v_lshlrev_b32 v10, 3, v7')
    g('v_add_u32 v9, v9, v10'); g('v_and_b32 v10, 7, v0'); g('v_add_u32 v9, v9, v10'); g('v_lshlrev_b32 v9, 1, v9')
    g(f'v_add_u32 v9, {LDS_T + 4096}, v9')
    tl('pretab')
    g('s_barrier')
    tl('ptab')
    for gi in range(7):
        g(f'ds_read_b64 v[{SZ + 4 * gi}:{SZ + 4 * gi + 1}], v8 offset:{gi * 256}')
        g(f'ds_read_b64 v[{SZ + 4 * gi + 2}:{SZ + 4 * gi + 3}], v8 offset:{2048 + gi * 256}')
    g('s_waitcnt lgkmcnt(4)')
    g(f'ds_read_b64 v[{SZ + 28}:{SZ + 29}], v8 offset:{7 * 256}')
    g(f'ds_read_b64 v[{SZ + 30}:{SZ + 31}], v8 offset:{2048 + 7 * 256}')
    for q in range(8): g(f'ds_read_u16 v{AR + q}, v9 offset:{256 * q}')
    if denorm:
        g('s_mov_b32 s58, 0x7b800000'); g('s_mov_b32 s59, 0x4e000000')
    def group_consts(gi):
        r = SZ + 4 * gi; S, C = CB + 8 * gi, CB + 8 * gi + 4
        for h in range(2):
            g(f'v_lshlrev_b32 v{S + 2 * h}, 16, v{r + h}'); g(f'v_and_b32 v{S + 2 * h + 1}, 0xffff0000, v{r + h}')
            g(f'v_lshlrev_b32 v{C + 2 * h}, 16, v{r + 2 + h}'); g(f'v_and_b32 v{C + 2 * h + 1}, 0xffff0000, v{r + 2 + h}')
        for t in range(4): g(f'v_mul_f32_e64 v{C + t}, -v{C + t}, v{S + t}')
        if denorm:
            for t in range(4): g(f'v_mul_f32 v{C + t}, 0x31000000, v{C + t}')
            for t in range(4): g(f'v_mul_f32 v{S + t}, s58, v{S + t}')
    for s in range(w_pre, w_pre + w_mid):
        for j in range(8): w_load(s, j)
    if lazy:
        assert grouped
        g('s_waitcnt lgkmcnt(10)')
        group_consts(0)
        g('s_waitcnt lgkmcnt(0)')
    else:
        g('s_waitcnt lgkmcnt(10)')
        for gi in range(5): group_consts(gi)
        g('s_waitcnt lgkmcnt(0)')
        for gi in range(5, 8): group_consts(gi)
    for q in range(8):
        g(f'v_lshlrev_b32 v{AR + q}, 16, v{AR + q}')
        if denorm: g(f'v_mul_f32 v{AR + q}, s59, v{AR + q}')
    def stage_consts(s):
        if grouped: return []
        ops = [lambda: (sigma('s91', s), g('s_lshr_b32 s91, s91, 1'), g('s_lshl_b32 s91, s91, 3'), g('s_set_gpr_idx_on s91, gpr_idx(SRC0)'))]
        for i in range(8): ops.append(lambda i=i: g(f'v_mov_b32 v{S0 + i}, v{CB + i}'))
        ops.append(lambda: g('s_set_gpr_idx_off'))
        return ops
    def col_ops(s, t):
        regs = [qreg(s, j) + t for j in range(8)]
        ops = []
        S0, C0 = (CB + 8 * (s // 2), CB + 8 * (s // 2) + 4) if grouped else (8, 12)
        if 'V' not in abl:
            if not denorm:
                for r in regs: ops.append(lambda r=r: g(f'v_cvt_f32_i32 v{r}, v{r}'))
            for r in regs: ops.append(lambda r=r: g(f'v_fma_f32 v{r}, v{r}, v{S0 + t}, v{C0 + t}'))
            for j, r in enumerate(regs):
                ops.append(lambda r=r, j=j: g(f'v_mul_f32_dpp v{r}, v{AR + (s >> 1)}, v{r} row_newbcast:{8 * (s & 1) + j} row_mask:0xf bank_mask:0xf'))
        for jp in range(4):
            ops.append(lambda jp=jp: g(f'v_cvt_pk_bf16_f32 v{P0 + 4 * t + jp}, v{regs[2 * jp]}, v{regs[2 * jp + 1]}'))
        return ops
    for s in range(NS):
        loads = [(lambda ss=ss, j=j: w_load(ss, j)) for ss in wsched[s] for j in range(8)]
        per = [loads[len(loads) * t // 4: len(loads) * (t + 1) // 4] for t in range(4)]
        for t in range(4):
            if t == 0:
                for f in stage_consts(s): f()
                if lazy and s % 2 == 1 and s < NS - 1: group_consts((s + 1) // 2)
                tl(f'pre{s}')
                assert w_next[0] > s
                vm.wait(('W', s))
                tl(f'd{s}')
            interleave(col_ops(s, t), per[t])
            if t == 0 and s >= 2:
                g('s_waitcnt lgkmcnt(0)'); g('s_barrier')
                tl(f'p{s - 1}')
            if 'D' not in abl:
                g(f'ds_write_b128 v{VWW}, v[{P0 + 4 * t}:{P0 + 4 * t + 3}] offset:{(s & 1) * 16384 + t * 512}')
        if s == 0 or s == NS - 1:
            g('s_waitcnt lgkmcnt(0)'); g('s_barrier')
            tl(f'p{s}')
    if stamps:
        if not mark:
            g('s_memtime s[66:67]'); g('s_memtime s[68:69]')
        g('s_memtime s[70:71]'); g('s_memrealtime s[72:73]')
        g('s_add_u32 s3, s3, 4')
        g('L_stamp:')
        g('s_waitcnt lgkmcnt(0)')
        g('s_mov_b32 s76, s60'); g('s_mov_b32 s77, s61'); g(f's_mov_b32 s78, {256 if stamps == "dbg" else 0x10000000}'); g('s_mov_b32 s79, 0x20000')
        if stamps == 'dbg':
            g('s_cmp_lg_u32 s3, 0'); g('s_cbranch_scc1 L_end')
            g(f's_sub_u32 s51, s2, {NH}')
            g('s_mul_i32 s48, s51, 0x38f'); g('s_lshr_b32 s49, s48, 16'); g('s_mul_i32 s50, s49, 72'); g('s_cmp_lg_u32 s50, s51'); g('s_cbranch_scc1 L_end')
            g('v_mov_b32 v16, s62')
            g('s_sub_u32 s48, s66, s64'); g('s_sub_u32 s50, s70, s68'); g('s_lshl_b32 s50, s50, 16'); g('s_or_b32 s48, s48, s50'); g('v_mov_b32 v17, s48')
            g('s_sub_u32 s48, s68, s66'); g('v_mov_b32 v18, s48')
            g('s_sub_u32 s48, s72, s62'); g('v_mov_b32 v19, s48')
            g('s_lshl_b32 s48, s49, 4'); g('v_mov_b32 v24, s48')
            g('v_cmp_eq_u32 vcc, 0, v0'); g('s_and_saveexec_b64 s[74:75], vcc'); g('s_cbranch_execz L_end')
            g('buffer_store_dwordx4 v[16:19], v24, s[76:79], 0 offen')
            g('s_endpgm')
        g('s_lshl_b32 s48, s2, 3'); g('s_add_u32 s48, s48, s3'); g('s_lshl_b32 s48, s48, 5')
        for i, r in enumerate((62, 64, 66, 68, 70, 72)): g(f'v_mov_b32 v{16 + i}, s{r}')
        g('s_getreg_b32 s49, hwreg(HW_REG_XCC_ID)'); g('v_mov_b32 v22, s49'); g('v_mov_b32 v23, s63')
        g('v_mov_b32 v24, s48')
        g('v_cmp_eq_u32 vcc, 0, v0'); g('s_and_saveexec_b64 s[74:75], vcc'); g('s_cbranch_execz L_end')
        g('buffer_store_dwordx4 v[16:19], v24, s[76:79], 0 offen')
        g('buffer_store_dwordx4 v[20:23], v24, s[76:79], 0 offen offset:16')
    g('s_endpgm')

    if helpers:
        g('L_help:')
        if hx_only:
            g('s_nop 3')
            g('s_lshl_b32 s48, s2, 3'); g('s_add_u32 s48, s48, s3'); g('s_lshl_b32 s49, s48, 14')
            g('v_lshrrev_b32 v4, 3, v0'); g('v_lshlrev_b32 v4, 11, v4'); g('v_and_b32 v3, 7, v0'); g('v_lshlrev_b32 v3, 7, v3')
            g('v_add_u32 v3, v3, v4'); g('v_add_u32 v3, s49, v3')
            g('s_mov_b32 s19, 0x20000'); g(f's_mov_b32 s18, {M * K * 2}')
            g('s_waitcnt lgkmcnt(0)')
            g('s_mov_b32 s16, s4'); g('s_mov_b32 s17, s5')
            for i, half in enumerate(helpers):
                g(f'buffer_load_dword v{8 + i}, v3, s[16:19], 0 offen offset:{half * 1024}')
            g('s_endpgm')
        g('s_lshr_b32 s48, s2, 3'); g('s_lshl_b32 s48, s48, 3'); g('s_add_u32 s48, s48, s3')
        g('s_lshr_b32 s49, s30, 1'); g('s_mul_i32 s49, s49, 3584')
        g(f's_mul_i32 s50, s48, {2 * WROW}'); g('s_add_u32 s49, s49, s50')
        g('v_min_u32 v2, 55, v0'); g('v_cmp_le_u32 vcc, 28, v2'); g('v_subrev_u32 v3, 28, v2'); g('s_nop 0'); g('v_cndmask_b32 v3, v2, v3, vcc')
        g('v_lshlrev_b32 v3, 7, v3'); g(f'v_mov_b32 v4, {WROW}'); g('v_cndmask_b32 v4, 0, v4, vcc'); g('v_add_u32 v2, v3, v4'); g('v_add_u32 v2, s49, v2')
        g('s_and_b32 s49, s30, 1'); g('s_lshl_b32 s49, s49, 10'); g('s_lshl_b32 s50, s48, 5'); g('s_add_u32 s49, s49, s50'); g('s_lshl_b32 s49, s49, 11')
        g('v_and_b32 v3, 31, v0'); g('v_lshlrev_b32 v3, 11, v3'); g('v_add_u32 v3, s49, v3')
        g('s_mov_b32 s51, 0')
        if sx:
            g('s_lshr_b32 s51, s30, 1'); g('s_xor_b32 s51, s51, s30'); g('s_and_b32 s51, s51, 1'); g(f's_mul_i32 s51, s51, {sx}')
        g('s_mov_b32 s19, 0x20000'); g('s_mov_b32 s23, 0x20000'); g(f's_mov_b32 s18, {M * K * 2}'); g(f's_mov_b32 s22, {K * WROW}')
        g('s_waitcnt lgkmcnt(0)')
        g('s_mov_b32 s16, s4'); g('s_mov_b32 s17, s5'); g('s_mov_b32 s20, s6'); g('s_mov_b32 s21, s7')
        for i, st in enumerate(helpers):
            g(f's_xor_b32 s52, s51, {st}'); g(f's_mul_i32 s48, s52, {64 * WROW}'); g('s_lshl_b32 s50, s52, 7')
            g('s_mov_b32 exec_hi, 0x00ffffff')
            g(f'buffer_load_dword v{8 + i}, v2, s[20:23], s48 offen')
            g('s_mov_b32 exec_hi, 0')
            g(f'buffer_load_dword v{32 + i}, v3, s[16:19], s50 offen')
        g('s_endpgm')
    g('L_end:')
    g('s_endpgm')
    g('.section .rodata,"a"'); g('.p2align 6'); g(f'.amdhsa_kernel {KN}')
    g('  .amdhsa_next_free_vgpr 256'); g('  .amdhsa_next_free_sgpr 100'); g('  .amdhsa_accum_offset 256')
    g('  .amdhsa_group_segment_fixed_size 0'); g('  .amdhsa_kernarg_size 64'); g('  .amdhsa_user_sgpr_count 2')
    g('  .amdhsa_user_sgpr_kernarg_segment_ptr 1'); g('  .amdhsa_system_sgpr_workgroup_id_x 1')
    g('  .amdhsa_float_denorm_mode_32 3')
    g('.end_amdhsa_kernel')
    return g.text()
```

```python
import cfg, gen3
src = gen3.gen(sperm=cfg.SG1, lazy=True, ep2=True, denorm=False, sx=2, store_flags='sc1', cprio=1)
hdr = open('standalone__weight_only_int_omniquant__prompt.s.ref').read().split('\n')
hdr = [h for h in hdr if h.startswith(';') and '@launch' not in h and 'Override launch' not in h and 'grid=ceil' not in h][:9]
doc = """;
; out[2048,3584] = (x * act_scale) @ ((qw - zeros) * scales), bf16 MFMA with fp32 accumulation, one launch.
; One 256x128 output tile per workgroup (224 workgroups), K = 1024 in 16 stages of 64.
;   waves 0-3: stage their 64 rows of x into LDS with LDS-DMA (4 slots of 32 KB, 16-byte chunks XOR-swizzled by row),
;              read fragments, run v_mfma_f32_32x32x16_bf16, convert and store their 64x128 part of the tile.
;   waves 4-7: load qw (int32), compute act_scale[k] * (q * s - z * s) in fp32, round to bf16 and write the
;              64x128 weight stage into LDS (2 buffers of 16 KB) in MFMA fragment order.
; One s_barrier per stage publishes the next weight stage and frees the previous one.
; Workgroups with equal id mod 8 cover a 1024x896 part of the output. The four workgroups that share a weight tile
; (and the ones that share an x tile) visit the eight K groups of 128 in different orders (nibbles of s[96:97]),
; so that most stages are already in L2 when a workgroup asks for them. The order affects speed only.
; The scale, zero-point and act_scale tables are staged once through the second weight buffer.""".split('\n')
lines = src.split('\n')
out = []
for ln in lines:
    if ln == 's_setprio 1': out.append('; ---------------------------------------------------------------- MFMA waves')
    if ln == 'L_prod:': out.append('; ---------------------------------------------------------------- dequantising waves')
    out.append(ln)
open('standalone__weight_only_int_omniquant__prompt.s', 'w').write('\n'.join(hdr + doc + out))
```

```python
def coop(pre=2, dist=4, w_lim=8, x_lim=4, a_post=2):
    rounds = []
    for i in range(pre):
        wt = {}
        wt[0] = 2 * i; wt[1] = 2 * i + 1
        wt[2] = min(2 * i, x_lim - 1); wt[3] = min(2 * i + 1, x_lim - 1)
        rounds.append(wt)
    stage = {}
    for s in range(16):
        tau = s + dist
        if 2 * pre <= tau < w_lim: stage[(s, 1)] = {0: tau}
    return dict(pre=rounds, stage=stage, a_post=a_post, pre_wait=pre - 1)

G1 = [[1, 0, 2, 3, 4, 6, 5, 7], [0, 1, 2, 4, 3, 5, 6, 7], [1, 0, 3, 2, 4, 5, 7, 6], [1, 2, 0, 3, 5, 4, 6, 7]]
G2 = [[1, 0, 4, 3, 2, 5, 6, 7], [1, 0, 2, 3, 4, 7, 5, 6], [0, 3, 1, 2, 6, 4, 5, 7], [1, 2, 0, 5, 3, 4, 6, 7]]
G4 = [[3, 0, 5, 1, 2, 4, 6, 7], [2, 0, 1, 6, 3, 4, 5, 7], [1, 0, 2, 3, 7, 4, 5, 6], [0, 4, 1, 2, 3, 5, 6, 7]]
G0 = [[0, 2, 1, 3, 4, 5, 6, 7], [0, 1, 3, 2, 4, 5, 7, 6], [0, 2, 1, 4, 3, 6, 5, 7], [0, 1, 2, 3, 5, 4, 6, 7]]
GX = [[t ^ r for t in range(8)] for r in range(4)]

def from_groups(G): return [[2 * g + h for g in p for h in range(2)] for p in G]
A1 = [[1, 0, 2, 4, 3, 5, 6, 8, 7, 9, 10, 12, 11, 13, 14, 15], [0, 1, 3, 2, 5, 4, 6, 7, 8, 10, 9, 11, 13, 12, 14, 15],
      [0, 2, 1, 3, 4, 5, 7, 6, 9, 8, 10, 11, 12, 14, 13, 15], [1, 0, 2, 3, 4, 6, 5, 7, 8, 9, 11, 10, 12, 13, 15, 14]]
A2 = [[1, 2, 0, 3, 4, 5, 8, 6, 7, 11, 9, 10, 14, 12, 13, 15], [0, 2, 1, 3, 6, 4, 5, 9, 7, 8, 10, 11, 12, 15, 13, 14],
      [1, 3, 4, 0, 2, 7, 5, 6, 8, 9, 12, 10, 11, 13, 14, 15], [0, 3, 1, 5, 2, 4, 6, 7, 10, 8, 9, 13, 11, 12, 14, 15]]
SG1 = from_groups(G1)
ID = [list(range(16))] * 4

def canon(P):
    n = len(P[0]); first = {}
    for t in range(n):
        for p in P: first.setdefault(p[t], len(first))
    return [[first[s] for s in p] for p in P]
B2 = canon([[6,11,0,4,13,15,1,5,8,14,3,7,9,2,10,12],[0,6,13,11,5,4,8,15,1,14,3,7,10,12,2,9],[0,13,6,11,1,4,5,14,3,15,8,2,10,7,9,12],[13,11,1,0,6,4,5,15,8,7,10,3,14,2,9,12]])
B3 = canon([[14,5,2,11,10,3,12,1,9,0,4,15,7,6,8,13],[3,2,5,14,10,12,0,11,9,6,4,13,15,1,8,7],[2,5,12,14,10,4,11,3,15,0,1,9,6,8,13,7],[5,10,14,2,9,12,11,3,4,0,8,1,15,6,13,7]])
B4 = canon([[15,6,10,7,3,0,11,12,5,8,9,4,13,14,1,2],[15,0,12,7,11,6,10,14,13,5,4,9,3,8,1,2],[11,10,0,12,15,6,9,7,3,5,4,2,14,13,8,1],[10,5,0,6,15,11,4,12,3,7,1,14,13,8,9,2]])
SG2 = from_groups(G2)
SH2 = from_groups(canon([[7,4,3,1,2,0,5,6],[3,4,0,7,1,5,2,6],[1,4,3,7,0,6,5,2],[1,4,3,5,7,0,2,6]]))
SH3 = from_groups(canon([[7,2,5,6,3,1,0,4],[2,6,7,5,4,0,3,1],[6,3,5,0,7,2,4,1],[5,2,6,7,3,0,4,1]]))

def canon_g(P):
    first = {}
    for t in range(16):
        for p in P: first.setdefault(p[t] >> 1, len(first))
    return [[2 * first[s >> 1] + (s & 1) for s in p] for p in P]
H5 = canon_g([[5,4,12,13,8,9,15,14,2,3,7,6,11,10,0,1],[12,13,4,5,8,9,3,2,11,10,14,15,1,0,6,7],[4,5,12,13,3,2,8,9,15,14,6,7,10,11,1,0],[13,12,8,9,4,5,3,2,15,14,11,10,0,1,6,7]])
H6 = canon_g([[13,12,2,3,8,9,15,14,10,11,4,5,6,7,0,1],[12,13,9,8,15,14,3,2,10,11,6,7,5,4,0,1],[9,8,13,12,2,3,15,14,4,5,10,11,6,7,0,1],[12,13,9,8,2,3,10,11,14,15,4,5,0,1,7,6]])

def swap_at(P, spec):
    Q = [p[:] for p in P]
    for r, i in spec: Q[r][2 * i], Q[r][2 * i + 1] = Q[r][2 * i + 1], Q[r][2 * i]
    return Q
S1 = swap_at(SG1, [(0, 0)])
S2 = swap_at(SG1, [(2, 0)])
SG0 = from_groups(G0)
S3 = swap_at(SG0, [(1, 0), (3, 0)])
S4 = swap_at(SG0, [(1, 0), (3, 0), (2, 1), (3, 1)])

K1 = [[0, 1, 2, 3, 4, 6, 5, 7], [1, 0, 2, 4, 3, 5, 6, 7], [0, 1, 3, 2, 4, 5, 7, 6], [0, 2, 1, 3, 5, 4, 6, 7]]
KID = [list(range(8))] * 4

Z33 = [[[2,1,0,3,7,4,6,5],[2,0,3,1,4,7,5,6],[1,2,0,3,6,4,5,7],[0,2,1,3,4,6,5,7],[2,3,1,0,4,7,6,5],[0,1,4,2,3,7,6,5],[1,0,3,2,4,5,7,6]],
[[0,1,4,2,3,6,7,5],[1,2,0,3,4,5,7,6],[2,1,3,0,4,7,6,5],[2,0,3,1,7,4,6,5],[1,2,3,0,4,6,5,7],[2,3,0,1,4,7,6,5],[0,2,3,1,6,4,5,7]],
[[1,0,2,3,6,4,7,5],[0,1,2,4,3,6,7,5],[0,2,1,4,3,6,5,7],[0,3,2,1,4,7,6,5],[1,2,4,0,3,7,6,5],[1,0,2,3,7,4,6,5],[2,1,0,4,3,7,6,5]],
[[1,2,3,0,4,7,5,6],[1,0,2,3,6,4,7,5],[0,1,2,3,4,5,6,7],[1,0,4,2,3,7,6,5],[0,2,1,3,7,4,6,5],[0,1,2,3,4,6,5,7],[2,3,1,0,4,6,7,5]]]
Z32 = [[[0,3,1,2,7,4,5,6],[3,2,0,1,6,7,5,4],[1,2,0,3,7,5,6,4],[2,3,1,0,4,5,6,7],[0,2,3,1,5,4,7,6],[0,2,1,3,4,7,6,5],[2,1,3,0,5,6,7,4]],
[[2,0,3,1,4,7,5,6],[1,3,2,0,7,4,6,5],[3,1,0,2,6,7,5,4],[1,2,3,0,5,7,6,4],[1,2,0,3,4,6,5,7],[1,3,0,2,6,5,7,4],[0,3,2,1,7,6,4,5]],
[[1,2,0,3,5,7,4,6],[2,1,3,0,5,7,6,4],[2,0,3,1,4,7,6,5],[0,1,3,2,6,5,4,7],[3,2,1,0,7,5,6,4],[2,1,3,0,5,4,6,7],[3,0,2,1,6,7,4,5]],
[[3,2,1,0,6,7,4,5],[0,2,1,3,4,5,7,6],[0,3,2,1,5,4,6,7],[3,2,0,1,7,6,5,4],[2,1,3,0,6,7,4,5],[3,0,2,1,7,6,5,4],[1,0,3,2,4,5,6,7]]]
WG1 = [[G1[(r + c) & 3] for c in range(7)] for r in range(4)]
Y1 = [[[1,0,3,2,4,5,7,6],[0,2,1,4,3,5,6,7],[1,2,0,4,3,5,6,7],[2,1,0,3,5,4,6,7],[0,1,2,3,4,6,5,7],[0,1,3,2,4,5,6,7],[1,2,0,3,4,7,5,6]],
[[2,1,0,4,3,5,7,6],[2,0,3,1,4,5,7,6],[0,1,2,3,5,4,7,6],[0,2,1,3,4,6,5,7],[1,2,0,4,3,5,6,7],[1,0,2,3,4,7,5,6],[2,1,3,0,4,5,7,6]],
[[0,2,1,3,4,7,6,5],[0,2,1,3,5,4,6,7],[1,0,3,2,4,5,7,6],[1,2,0,4,3,5,7,6],[2,0,3,1,4,5,6,7],[2,0,1,3,4,6,5,7],[0,1,2,3,5,4,7,6]],
[[1,0,2,3,5,4,7,6],[1,2,0,3,4,6,5,7],[2,0,1,3,4,7,5,6],[2,0,3,1,4,5,6,7],[2,0,1,3,5,4,7,6],[0,1,2,4,3,5,6,7],[2,1,0,4,3,5,6,7]]]
Y2 = [[[0,1,2,4,3,5,6,7],[0,2,1,4,3,5,6,7],[0,1,2,3,5,6,4,7],[1,2,0,3,6,4,5,7],[2,1,3,0,4,6,5,7],[0,1,2,3,4,6,7,5],[2,1,3,0,4,6,5,7]],
[[1,0,3,2,4,5,6,7],[2,1,0,3,4,6,7,5],[0,2,3,1,4,5,6,7],[0,1,3,2,4,6,5,7],[1,2,0,3,6,4,5,7],[1,2,0,3,5,6,4,7],[1,0,2,4,3,5,6,7]],
[[2,0,1,3,4,5,7,6],[1,2,3,0,4,6,5,7],[2,0,1,3,4,5,7,6],[2,1,0,4,3,5,6,7],[2,0,1,3,4,5,7,6],[0,1,2,3,6,4,5,7],[2,0,1,3,5,4,6,7]],
[[0,1,2,3,5,6,4,7],[1,2,0,3,6,4,5,7],[1,2,0,4,3,5,6,7],[0,2,1,3,4,6,7,5],[0,1,2,4,3,6,5,7],[2,0,3,1,4,5,6,7],[0,2,1,3,4,5,7,6]]]
```

```python
KN = 'standalone__weight_only_int_omniquant__prompt_kernel'
M, N, K = 2048, 3584, 1024
NS = 16
NWG = 224
WROW = N * 4
OROW = N * 2
LDS_W = 131072
LDS_T = LDS_W + 16384

class G:
    def __init__(self): self.L = []
    def __call__(self, s): self.L.append(s)
    def text(self): return '\n'.join(self.L) + '\n'

class VM:
    def __init__(self, g): self.g = g; self.q = []
    def issue(self, ins, tag):
        self.g(ins); self.q.append(tag)
        assert len(self.q) <= 63, len(self.q)
    def wait(self, tag):
        idx = [i for i, t in enumerate(self.q) if t == tag]
        if not idx: return
        n = len(self.q) - 1 - idx[-1]
        self.g(f's_waitcnt vmcnt({n})')
        self.q = self.q[idx[-1] + 1:]

def interleave(body, extra):
    n = len(extra)
    if not n:
        for b in body: b()
        return
    step = len(body) / n; k = 0
    for i, b in enumerate(body):
        b()
        while k < n and (k + 0.5) * step <= i + 1:
            extra[k](); k += 1
    while k < n:
        extra[k](); k += 1

def gen(sperm, sx=0, denorm=True, store_flags='sc1', cprio=1, pprio=0, helpers=None, stamps=False, mark=None,
        a_post=2, la=13, w_pre=2, wla=2, w0_loads=0, snake=True, wload_flags='', aload_flags='', pad=0, abl='', coop=0, coop_from=2, coop_step=1, coop_pre='post', gstatic=True, lazy=False, w_mid=0, ep2=False, xmap=0, hx_only=False, wperm=None, rot0=0, store_flags1=None):
    g = G()
    def tl(name):
        if mark and name == mark[0]: g('s_memtime s[66:67]')
        if mark and name == mark[1]: g('s_memtime s[68:69]')
    NH = 32 if helpers else 0
    g(f'; @launch grid=({NWG + NH},1,1) block=(512,1,1) lds=163840')
    g('.amdgcn_target "amdgcn-amd-amdhsa--gfx950"')
    g('.text'); g(f'.globl {KN}'); g('.p2align 8'); g(f'.type {KN},@function'); g(f'{KN}:')
    g('s_load_dwordx8 s[4:11], s[0:1], 0')
    g('s_load_dwordx4 s[12:15], s[0:1], 32')
    if stamps:
        g(f's_load_dwordx2 s[60:61], s[0:1], {48 if stamps == "dbg" else 56}')
        g('s_memrealtime s[62:63]')
        g('s_memtime s[64:65]')
    if pad: g('s_memrealtime s[80:81]')
    g(f's_cmp_ge_u32 s2, {NWG + NH}')
    g('s_cbranch_scc1 L_end')
    g('v_lshrrev_b32 v1, 6, v0')
    g('v_and_b32 v0, 63, v0')
    g('s_and_b32 s30, s2, 7')
    g('v_readfirstlane_b32 s3, v1')
    if helpers:
        g(f's_cmp_lt_u32 s2, {NH}'); g('s_cbranch_scc1 L_help')
        g(f's_sub_u32 s31, s2, {NH}'); g('s_lshr_b32 s31, s31, 3')
    else:
        g('s_lshr_b32 s31, s2, 3')
    if xmap == 1:
        g('s_lshr_b32 s48, s30, 2'); g('s_and_b32 s30, s30, 3'); g('s_lshl_b32 s30, s30, 1'); g('s_or_b32 s30, s30, s48')
    elif xmap == 2:
        g('s_lshr_b32 s48, s30, 2'); g('s_lshl_b32 s49, s48, 1'); g('s_xor_b32 s30, s30, s49'); g('s_and_b32 s30, s30, 3'); g('s_lshl_b32 s30, s30, 1'); g('s_or_b32 s30, s30, s48')
    g('s_and_b32 s28, s30, 1'); g('s_lshl_b32 s28, s28, 2'); g('s_and_b32 s48, s31, 3'); g('s_add_u32 s28, s28, s48')
    g('s_lshr_b32 s29, s30, 1'); g('s_mul_i32 s29, s29, 7'); g('s_lshr_b32 s49, s31, 2'); g('s_add_u32 s29, s29, s49')
    if wperm:
        gw = [sum(wperm[i & 3][i >> 2][j] << (4 * j) for j in range(8)) for i in range(28)]
        g(f's_mov_b32 s95, {gw[0]}')
        for i in range(1, 28):
            g(f's_cmp_eq_u32 s31, {i}'); g(f's_cselect_b32 s95, {gw[i]}, s95')
        if sx:
            g('s_lshr_b32 s48, s30, 1'); g('s_xor_b32 s48, s48, s30'); g('s_and_b32 s48, s48, 1'); g(f's_mul_i32 s48, s48, {(sx >> 1) * 0x11111111}')
            g('s_xor_b32 s95, s95, s48')
        for half, dst in ((0, 's96'), (1, 's97')):
            g(f's_mov_b32 {dst}, 0x10101010')
            for j in range(4):
                g(f's_bfe_u32 s48, s95, {(4 * (4 * half + j)) | (3 << 16)}'); g('s_mul_i32 s48, s48, 0x22'); g(f's_lshl_b32 s48, s48, {8 * j}'); g(f's_add_u32 {dst}, {dst}, s48')
    else:
        g('s_add_u32 s48, s48, s49'); g('s_and_b32 s48, s48, 3')
        words = [sum(p[i] << (4 * i) for i in range(16)) for p in sperm]
        g(f's_mov_b32 s96, {words[0] & 0xffffffff}'); g(f's_mov_b32 s97, {words[0] >> 32}')
        for r in range(1, 4):
            g(f's_cmp_eq_u32 s48, {r}'); g(f's_cselect_b32 s96, {words[r] & 0xffffffff}, s96'); g(f's_cselect_b32 s97, {words[r] >> 32}, s97')
        if sx:
            g('s_lshr_b32 s48, s30, 1'); g('s_xor_b32 s48, s48, s30'); g('s_and_b32 s48, s48, 1'); g(f's_mul_i32 s48, s48, {sx * 0x11111111}')
            g('s_xor_b32 s96, s96, s48'); g('s_xor_b32 s97, s97, s48')
    grouped = bool(wperm) or gstatic and all(p[2 * i] % 2 == 0 and p[2 * i + 1] == p[2 * i] + 1 for p in sperm for i in range(8)) and sx % 2 == 0
    def sigma(dst, t):
        g(f's_bfe_u32 {dst}, s{96 + t // 8}, {(4 * (t % 8)) | (4 << 16)}')
    g('s_cmp_ge_u32 s3, 4')
    g('s_cbranch_scc1 L_prod')

    if cprio: g(f's_setprio {cprio}')
    vm = VM(g)
    VAE, VAO = 12, 13
    if grouped:
        g('v_lshrrev_b32 v1, 4, v0'); g('v_lshlrev_b32 v1, 3, v1'); g('v_add_u32 v1, 1, v1'); g('v_mov_b32 v2, s96'); g('v_mov_b32 v5, s97')
        g('v_lshrrev_b32 v2, v1, v2'); g('v_lshrrev_b32 v5, v1, v5'); g('v_and_b32 v1, 7, v2'); g('v_and_b32 v5, 7, v5')
        g(f'v_mul_u32_u24 v1, {OROW}, v1'); g(f'v_mul_u32_u24 v5, {OROW}, v5'); g('v_and_b32 v2, 15, v0'); g('v_lshlrev_b32 v2, 4, v2')
        g('v_add_u32 v1, v1, v2'); g('v_add_u32 v5, v5, v2')
    else:
        g('v_lshrrev_b32 v1, 4, v0'); g(f'v_mul_u32_u24 v1, {OROW}, v1'); g('v_and_b32 v2, 15, v0'); g('v_lshlrev_b32 v2, 4, v2'); g('v_add_u32 v1, v1, v2')
    g('v_lshrrev_b32 v3, 3, v0'); g('v_lshlrev_b32 v3, 2, v3'); g('v_mov_b32 v2, s96'); g('v_mov_b32 v4, s97')
    g('v_lshrrev_b32 v2, v3, v2'); g('v_lshrrev_b32 v4, v3, v4'); g('v_and_b32 v2, 15, v2'); g('v_and_b32 v4, 15, v4')
    g('v_lshlrev_b32 v2, 7, v2'); g('v_lshlrev_b32 v4, 7, v4'); g('v_and_b32 v3, 7, v0'); g('v_lshlrev_b32 v3, 4, v3')
    g('v_add_u32 v2, v2, v3'); g('v_add_u32 v4, v4, v3')
    g('v_lshrrev_b32 v8, 3, v0'); g('v_lshlrev_b32 v8, 11, v8'); g('v_and_b32 v9, 7, v0'); g('v_lshrrev_b32 v10, 4, v0')
    g('v_xor_b32 v9, v9, v10'); g('v_lshlrev_b32 v9, 4, v9'); g(f'v_add_u32 v{VAE}, v8, v9'); g(f'v_xor_b32 v{VAO}, 64, v{VAE}')
    for q in range(8): g(f's_mov_b32 s{40 + q}, {q * 16384 - (q & 3) * 1024}')
    g('s_lshl_b32 s56, s3, 13')
    if rot0 & 4:
        assert not rot0 & 1
        g('s_lshr_b32 s48, s31, 4'); g('s_lshl_b32 s49, s48, 16'); g('s_lshl_b32 s50, s48, 12')
        for q in range(4): g(f's_add_u32 s{40 + q}, s{40 + q}, s49'); g(f's_sub_u32 s{44 + q}, s{44 + q}, s49')
        g('s_add_u32 s98, s56, s50'); g('s_add_u32 s99, s56, 4096'); g('s_sub_u32 s99, s99, s50')
    g('s_lshl_b32 s51, s29, 8')
    g('s_lshl_b32 s49, s3, 11'); g(f's_add_u32 s49, s49, {LDS_T}')
    g('s_mov_b32 m0, s49')
    g('s_mov_b32 s27, 0x20000'); g('s_mov_b32 s19, 0x20000')
    g('s_lshl_b32 s48, s28, 8'); g('s_lshl_b32 s49, s3, 6'); g('s_add_u32 s57, s48, s49')
    g('s_lshl_b32 s48, s57, 11')
    g('s_waitcnt lgkmcnt(0)')
    tl('karg')
    g('s_add_u32 s86, s4, s48'); g('s_addc_u32 s87, s5, 0'); g(f's_sub_u32 s88, {M * K * 2}, s48')
    g('s_cmp_eq_u32 s3, 3'); g('s_cbranch_scc1 L_tab_done')
    g('s_cmp_eq_u32 s3, 2'); g('s_cbranch_scc1 L_tab_a')
    g('s_cmp_eq_u32 s3, 0')
    g('s_cselect_b32 s24, s8, s10'); g('s_cselect_b32 s25, s9, s11')
    g('s_add_u32 s24, s24, s51'); g('s_addc_u32 s25, s25, 0')
    g(f's_sub_u32 s26, {8 * OROW}, s51')
    g('buffer_load_dwordx4 v1, s[24:27], 0 offen lds')
    if grouped:
        g('s_add_u32 m0, m0, 1024'); g('s_nop 0')
        g('buffer_load_dwordx4 v5, s[24:27], 0 offen lds')
    else:
        g(f's_mov_b32 s50, {4 * OROW - 1024}')
        g('buffer_load_dwordx4 v1, s[24:27], s50 offen offset:1024 lds')
    g('s_branch L_tab_done')
    g('L_tab_a:')
    g('s_mov_b32 s24, s12'); g('s_mov_b32 s25, s13'); g('s_mov_b32 s26, 2048')
    g('buffer_load_dwordx4 v2, s[24:27], 0 offen lds')
    g('s_add_u32 m0, m0, 1024'); g('s_nop 0')
    g('buffer_load_dwordx4 v4, s[24:27], 0 offen lds')
    g('L_tab_done:')
    a_next = [0]
    def a_piece(s, q):
        if q == 0:
            assert a_next[0] == s; a_next[0] = s + 1
            sigma('s89', s); g('s_lshl_b32 s90, s89, 7')
            g('s_add_u32 s16, s86, s90'); g('s_addc_u32 s17, s87, 0'); g('s_sub_u32 s18, s88, s90')
        if q % 4 == 0:
            if rot0 & 4: g(f's_add_u32 m0, s{98 + q // 4}, {(s % 4) * 32768}'); g('s_nop 0')
            else: g(f's_add_u32 m0, s56, {(s % 4) * 32768 + (q // 4) * 4096}'); g('s_nop 0')
        if 'A' in abl and s >= 4: return
        v = VAO if q & 1 else VAE
        vm.issue(f'buffer_load_dwordx4 v{v}, s[16:19], s{40 + q} offen offset:{(q & 3) * 1024} {aload_flags} lds', ('A', s))
    PFV, PFD = 15, 14
    n_pf = [0]
    if coop:
        g('s_and_b32 s48, s28, 3'); g('s_lshl_b32 s48, s48, 4')
        g('v_lshrrev_b32 v20, 2, v0'); g('v_add_u32 v20, s48, v20'); g(f'v_mul_u32_u24 v20, {WROW}, v20')
        g('v_and_b32 v21, 3, v0'); g('v_lshlrev_b32 v21, 7, v21'); g('v_add_u32 v20, v20, v21')
        g('s_lshl_b32 s48, s29, 9'); g('v_add_u32 v20, s48, v20')
        g('s_lshr_b32 s48, s31, 2'); g('s_mul_i32 s48, s48, 37')
        g('v_min_u32 v21, 36, v0'); g('v_add_u32 v21, s48, v21'); g('v_min_u32 v21, 255, v21')
        g('s_lshl_b32 s48, s28, 8'); g('v_add_u32 v21, s48, v21'); g('v_lshlrev_b32 v21, 11, v21')
        g(f's_mov_b32 s94, {M * K * 2}'); g('s_movk_i32 s91, 128')
        g('s_cmp_eq_u32 s3, 0')
        g('s_cselect_b32 s92, s6, s4'); g('s_cselect_b32 s93, s7, s5'); g(f's_cselect_b32 s94, {K * WROW}, s94')
        g(f's_cselect_b32 s91, {64 * WROW}, s91'); g('s_mov_b32 s95, 0x20000')
        g('s_cselect_b64 vcc, -1, 0')
        g(f'v_cndmask_b32 v{PFV}, v21, v20, vcc')
    def touch(t):
        n = n_pf[0]; n_pf[0] += 1
        g('s_cmp_ge_u32 s3, 2'); g(f's_cbranch_scc1 L_pf{n}')
        sigma('s48', t); g('s_mul_i32 s48, s48, s91')
        g('s_cmp_eq_u32 s3, 1'); g('s_cselect_b32 exec_hi, 0x1f, -1')
        g(f'buffer_load_dword v{PFD}, v{PFV}, s[92:95], s48 offen')
        g('s_mov_b32 exec_hi, -1')
        g(f'L_pf{n}:')
    XA = [2, 3, 4, 5]; XB = [6, 7, 8, 9]; WA = 10; OV = 11
    g('v_and_b32 v19, 31, v0'); g('v_lshrrev_b32 v22, 5, v0')
    g('s_lshl_b32 s48, s3, 6')
    g('v_add_u32 v16, s48, v19'); g('v_lshlrev_b32 v16, 7, v16')
    g('v_lshrrev_b32 v17, 1, v0'); g('v_and_b32 v17, 7, v17')
    for kk in range(4):
        g(f'v_add_u32 v18, {2 * kk}, v22'); g('v_xor_b32 v18, v18, v17'); g('v_lshlrev_b32 v18, 4, v18')
        g(f'v_add_u32 v{XA[kk]}, v16, v18'); g(f'v_add_u32 v{XB[kk]}, 0x10000, v{XA[kk]}')
    g('v_lshrrev_b32 v18, 4, v19'); g('v_mul_u32_u24 v18, 12, v18'); g('v_xor_b32 v18, v18, v19')
    g('v_lshlrev_b32 v18, 4, v18'); g('v_lshlrev_b32 v17, 11, v22'); g('v_add_u32 v18, v18, v17')
    g(f'v_add_u32 v{WA}, {LDS_W}, v18')
    g(f's_mul_i32 s48, s57, {OROW}'); g('s_add_u32 s48, s48, s51')
    g('s_add_u32 s52, s14, s48'); g('s_addc_u32 s53, s15, 0'); g(f's_sub_u32 s54, {M * OROW}, s48'); g('s_mov_b32 s55, 0x20000')
    if ep2:
        for i in range(8): g(f's_mov_b32 s{32 + i}, {(8 * (i >> 1) + 2 * (i & 1)) * OROW}')
    g(f'v_lshrrev_b32 v{OV}, 4, v0'); g(f'v_and_b32 v{OV}, 1, v{OV}'); g('v_lshlrev_b32 v17, 2, v22'); g(f'v_add_u32 v{OV}, v{OV}, v17')
    g(f'v_mul_u32_u24 v{OV}, {OROW}, v{OV}'); g('v_and_b32 v17, 15, v0'); g('v_lshlrev_b32 v17, 4, v17'); g(f'v_add_u32 v{OV}, v{OV}, v17')
    g('s_waitcnt vmcnt(0)')
    tl('pretab')
    g('s_barrier')
    tl('ptab')
    def a_stage_rot(s):
        a_next[0] = s + 1
        sigma('s89', s); g('s_lshl_b32 s90, s89, 7')
        g('s_add_u32 s16, s86, s90'); g('s_addc_u32 s17, s87, 0'); g('s_sub_u32 s18, s88, s90')
        g('s_lshr_b32 s48, s31, 2'); g('s_and_b32 s48, s48, 3')
        for v in range(4):
            if v < 3:
                g(f's_cmp_lg_u32 s48, {v}'); g(f's_cbranch_scc1 L_ar{s}_{v + 1}')
            last = None
            for i in range(8):
                q = (i + 2 * v) & 7
                if q // 4 != last:
                    last = q // 4
                    g(f's_add_u32 m0, s56, {(s % 4) * 32768 + (q // 4) * 4096}'); g('s_nop 0')
                g(f'buffer_load_dwordx4 v{VAO if q & 1 else VAE}, s[16:19], s{40 + q} offen offset:{(q & 3) * 1024} {aload_flags} lds')
            if v < 3:
                g(f's_branch L_ar{s}_end'); g(f'L_ar{s}_{v + 1}:')
        g(f'L_ar{s}_end:')
        vm.q += [('A', s)] * 8
    for s in range(a_post):
        if rot0 & 1:
            a_stage_rot(s); continue
        for q in range(8): a_piece(s, q)
        if coop and coop_pre == 'mid' and s == 0:
            for t in range(coop_from, coop): touch(t)
    if coop and coop_pre == 'post':
        for t in range(coop_from, coop): touch(t)
    a_sched = [(max(4 * s - la, 4 * (s - 4) + 3), s, q) for s in range(a_post, NS) for q in range(8)]
    vm.wait(('A', 0))
    tl('d0')
    g('s_barrier')
    tl('p0')
    if stamps and not mark: g('s_memtime s[66:67]')
    def acc(mt, t): return 128 + (mt * 4 + t) * 16
    def reads(s, kk, b):
        slot = s % 4
        xr = (XA if slot < 2 else XB)[kk]; xo = (slot & 1) * 32768
        wo = (s & 1) * 16384 + kk * 4096
        R = {}
        for mt in range(2): R['X%d' % mt] = f'ds_read_b128 v[{b + 4 * mt}:{b + 4 * mt + 3}], v{xr} offset:{xo + mt * 4096}'
        for t in range(4): R['W%d' % t] = f'ds_read_b128 v[{b + 8 + 4 * t}:{b + 8 + 4 * t + 3}], v{WA} offset:{wo + t * 512}'
        return R
    def mfma(s, kk, mt, t, b):
        if 'M' in abl and not (s == 0 and kk == 0): return
        a = acc(mt, t)
        c = '0' if (s == 0 and kk == 0) else f'v[{a}:{a + 15}]'
        g(f'v_mfma_f32_32x32x16_bf16 v[{a}:{a + 15}], v[{b + 4 * mt}:{b + 4 * mt + 3}], v[{b + 8 + 4 * t}:{b + 8 + 4 * t + 3}], {c}')
    LAST = NS - 1
    def fbase(s, kk):
        if s == LAST: return 16 + 24 * kk
        return 64 if (s == LAST - 1 and kk == 3) else (16, 40)[kk & 1]
    if snake:
        order = [(0, 0), (0, 1), (0, 2), (0, 3), (1, 3), (1, 2), (1, 1), (1, 0)]
        RO = ('X0', 'W0', 'W1', 'W2', 'W3', 'X1')
    else:
        order = [(0, 0), (0, 1), (1, 0), (1, 1), (0, 2), (1, 2), (0, 3), (1, 3)]
        RO = ('X0', 'W0', 'W1', 'X1', 'W2', 'W3')
    after = {0: RO[0:2], 1: RO[2:4], 2: RO[4:6]}
    R = reads(0, 0, fbase(0, 0))
    for k_ in RO: g(R[k_])
    n_st = [0]
    def store_ops2(mt, TB, nT):
        srd = 's[52:55]' if mt == 0 else 's[24:27]'
        grp = []
        for a_ in range(4):
            for b_ in range(2):
                r = 4 * a_ + 2 * b_
                T = TB + 4 * (n_st[0] % nT); n_st[0] += 1
                cv = []
                for rr, off in ((r, 0), (r + 1, 2)):
                    cv.append(lambda T=T, off=off, rr=rr: g(f'v_cvt_pk_bf16_f32 v{T + off}, v{acc(mt, 0) + rr}, v{acc(mt, 1) + rr}'))
                    cv.append(lambda T=T, off=off, rr=rr: g(f'v_cvt_pk_bf16_f32 v{T + off + 1}, v{acc(mt, 2) + rr}, v{acc(mt, 3) + rr}'))
                fin = [lambda T=T: g(f'v_permlane16_swap_b32 v{T}, v{T + 2}'), lambda T=T: g(f'v_permlane16_swap_b32 v{T + 1}, v{T + 3}'),
                       lambda T=T, i=2 * a_ + b_: g(f'buffer_store_dwordx4 v[{T}:{T + 3}], v{OV}, {srd}, s{32 + i} offen {store_flags if (mt == 0 or store_flags1 is None) else store_flags1}')]
                grp.append((cv, fin))
        ops = list(grp[0][0])
        for i in range(1, 8): ops += grp[i][0] + grp[i - 1][1]
        ops.append(lambda: g('s_nop 1'))
        ops += grp[7][1]
        return ops
    def store_ops(mt, TB, nT):
        if ep2: return store_ops2(mt, TB, nT)
        ops = []
        for a_ in range(4):
            for b_ in range(2):
                r = 4 * a_ + 2 * b_
                T = TB + 4 * (n_st[0] % nT); n_st[0] += 1
                for rr, off in ((r, 0), (r + 1, 2)):
                    ops.append(lambda T=T, off=off, rr=rr: g(f'v_cvt_pk_bf16_f32 v{T + off}, v{acc(mt, 0) + rr}, v{acc(mt, 1) + rr}'))
                    ops.append(lambda T=T, off=off, rr=rr: g(f'v_cvt_pk_bf16_f32 v{T + off + 1}, v{acc(mt, 2) + rr}, v{acc(mt, 3) + rr}'))
                ops.append(lambda a_=a_, b_=b_: (g(f's_mov_b32 s48, {(32 * mt + 8 * a_ + 2 * b_) * OROW}'), g('s_nop 0')))
                ops.append(lambda T=T: g(f'v_permlane16_swap_b32 v{T}, v{T + 2}'))
                ops.append(lambda T=T: g(f'v_permlane16_swap_b32 v{T + 1}, v{T + 3}'))
                ops.append(lambda T=T: g(f'buffer_store_dwordx4 v[{T}:{T + 3}], v{OV}, s[52:55], s48 offen {store_flags}'))
        return ops
    for s in range(LAST):
        for kk in range(4):
            b = fbase(s, kk)
            g('s_waitcnt lgkmcnt(0)')
            if kk == 3:
                tl(f'pre{s + 1}')
                assert not any(st_ <= s + 1 for _, st_, _q in a_sched), (s, a_sched[:3])
                vm.wait(('A', s + 1))
                tl(f'd{s + 1}')
                g('s_barrier')
                tl(f'p{s + 1}')
            nxt = reads(s, kk + 1, fbase(s, kk + 1)) if kk < 3 else reads(s + 1, 0, fbase(s + 1, 0))
            for i, (mt, t) in enumerate(order):
                mfma(s, kk, mt, t, b)
                if i in after and 'R' not in abl:
                    for k_ in after[i]: g(nxt[k_])
                if i in (3, 5) and a_sched and a_sched[0][0] <= 4 * s + kk:
                    _, st_, q_ = a_sched.pop(0); a_piece(st_, q_)
                if coop and kk == coop_step and i == 6 and s + coop < NS and s + coop >= coop_from: touch(s + coop)
    assert not a_sched
    if ep2:
        g(f's_add_u32 s24, s52, {32 * OROW}'); g('s_addc_u32 s25, s53, 0'); g(f's_sub_u32 s26, s54, {32 * OROW}'); g('s_mov_b32 s27, 0x20000')
    s = LAST
    TO = ('X0', 'W0', 'W1', 'W2', 'W3', 'X1')
    r1 = reads(s, 1, fbase(s, 1))
    for k_ in TO: g(r1[k_])
    for kk in range(4):
        b = fbase(s, kk)
        g(f's_waitcnt lgkmcnt({6 if kk < 3 else 0})')
        nxt = reads(s, kk + 2, fbase(s, kk + 2)) if kk < 2 else None
        for t in range(4):
            mfma(s, kk, 0, t, b)
            if nxt:
                for k_ in {0: TO[0:2], 1: TO[2:4], 2: TO[4:6], 3: ()}[t]: g(nxt[k_])
    mf = [(lambda kk=kk, t=t: mfma(s, kk, 1, t, fbase(s, kk))) for kk in range(4) for t in range(4)]
    for f in mf[:4]: f()
    g('s_nop 7')
    ops = store_ops(0, 112, 4)
    k = 0; rest = mf[4:]; per = len(ops) / len(rest)
    for i, f in enumerate(rest):
        f()
        while k < len(ops) and k < (i + 1) * per:
            ops[k](); k += 1
    if stamps and not mark: g('s_memtime s[68:69]')
    g('s_nop 15')
    for f in store_ops(1, 16, 8): f()
    if stamps:
        g('s_waitcnt vmcnt(0)'); g('s_memtime s[70:71]'); g('s_memrealtime s[72:73]'); g('s_branch L_stamp')
    if pad:
        g('L_pad:'); g('s_memrealtime s[82:83]'); g('s_waitcnt lgkmcnt(0)'); g('s_sub_u32 s84, s82, s80')
        g(f's_cmp_lt_u32 s84, {pad * 100}'); g('s_cbranch_scc1 L_pad')
    g('s_endpgm')

    g('L_prod:')
    if pprio: g(f's_setprio {pprio}')
    g('s_sub_u32 s3, s3, 4')
    vm = VM(g)
    VW, VWW = 1, 4
    D = 3; QB = 112; CB = 40; AR = 32; S0 = 8; C0 = 12; P0 = 16; SZ = 208
    g('v_and_b32 v5, 31, v0'); g('v_lshrrev_b32 v6, 5, v0')
    g('s_lshl_b32 s48, s3, 1'); g('v_add_u32 v7, s48, v6')
    g(f'v_mul_u32_u24 v{VW}, {8 * WROW}, v7'); g('v_lshlrev_b32 v8, 4, v5'); g(f'v_add_u32 v{VW}, v{VW}, v8')
    for j in range(8): g(f's_mov_b32 s{32 + j}, {j * WROW}')
    g('s_mov_b32 s23, 0x20000')
    g('s_lshl_b32 s49, s29, 9')
    g('s_waitcnt lgkmcnt(0)')
    tl('karg')
    g('s_add_u32 s86, s6, s49'); g('s_addc_u32 s87, s7, 0'); g(f's_sub_u32 s88, {K * WROW}, s49')
    def qreg(s, j): return QB + 32 * (s % D) + 4 * j
    w_next = [0]
    def w_load(s, j):
        if j == 0:
            assert w_next[0] == s; w_next[0] = s + 1
            sigma('s89', s); g(f's_mul_i32 s90, s89, {64 * WROW}')
            g('s_add_u32 s20, s86, s90'); g('s_addc_u32 s21, s87, 0'); g('s_sub_u32 s22, s88, s90')
        if 'W' in abl and s >= 4: return
        r = qreg(s, j)
        vm.issue(f'buffer_load_dwordx4 v[{r}:{r + 3}], v{VW}, s[20:23], s{32 + j} offen {wload_flags}', ('W', s))
    wsched = {}; nxt_ = w_pre + w_mid
    for s in range(NS):
        want = min(s + wla, NS - 1); lst = []
        cap = 2 if s > 0 else w0_loads
        while nxt_ <= want and len(lst) < cap:
            lst.append(nxt_); nxt_ += 1
        assert all(j <= s + D - 1 for j in lst)
        wsched[s] = lst
    assert nxt_ == NS and w_pre + w_mid <= D
    def w_stage_rot(s):
        w_next[0] = s + 1
        sigma('s89', s); g(f's_mul_i32 s90, s89, {64 * WROW}')
        g('s_add_u32 s20, s86, s90'); g('s_addc_u32 s21, s87, 0'); g('s_sub_u32 s22, s88, s90')
        g('s_and_b32 s48, s31, 3')
        for v in range(4):
            if v < 3:
                g(f's_cmp_lg_u32 s48, {v}'); g(f's_cbranch_scc1 L_wr{s}_{v + 1}')
            for i in range(8):
                j = (i + 2 * v) & 7; r = qreg(s, j)
                g(f'buffer_load_dwordx4 v[{r}:{r + 3}], v{VW}, s[20:23], s{32 + j} offen {wload_flags}')
            if v < 3:
                g(f's_branch L_wr{s}_end'); g(f'L_wr{s}_{v + 1}:')
        g(f'L_wr{s}_end:')
        vm.q += [('W', s)] * 8
    for s in range(w_pre):
        if rot0 & 2:
            w_stage_rot(s); continue
        for j in range(8): w_load(s, j)
    g('v_lshrrev_b32 v8, 1, v5'); g('v_and_b32 v9, 1, v5'); g('v_lshlrev_b32 v10, 4, v9'); g('v_add_u32 v8, v8, v10')
    g('v_mul_u32_u24 v9, 12, v9'); g('v_xor_b32 v8, v8, v9'); g('v_lshlrev_b32 v8, 4, v8')
    g('v_lshlrev_b32 v9, 11, v7'); g('v_add_u32 v8, v8, v9'); g(f'v_add_u32 v{VWW}, {LDS_W}, v8')
    g('v_lshlrev_b32 v8, 3, v5'); g(f'v_add_u32 v8, {LDS_T}, v8')
    g('v_lshrrev_b32 v9, 3, v0'); g('v_and_b32 v9, 1, v9'); g('v_lshlrev_b32 v9, 6, v9'); g('v_lshlrev_b32 v10, 3, v7')
    g('v_add_u32 v9, v9, v10'); g('v_and_b32 v10, 7, v0'); g('v_add_u32 v9, v9, v10'); g('v_lshlrev_b32 v9, 1, v9')
    g(f'v_add_u32 v9, {LDS_T + 4096}, v9')
    tl('pretab')
    g('s_barrier')
    tl('ptab')
    for gi in range(7):
        g(f'ds_read_b64 v[{SZ + 4 * gi}:{SZ + 4 * gi + 1}], v8 offset:{gi * 256}')
        g(f'ds_read_b64 v[{SZ + 4 * gi + 2}:{SZ + 4 * gi + 3}], v8 offset:{2048 + gi * 256}')
    g('s_waitcnt lgkmcnt(4)')
    g(f'ds_read_b64 v[{SZ + 28}:{SZ + 29}], v8 offset:{7 * 256}')
    g(f'ds_read_b64 v[{SZ + 30}:{SZ + 31}], v8 offset:{2048 + 7 * 256}')
    for q in range(8): g(f'ds_read_u16 v{AR + q}, v9 offset:{256 * q}')
    if denorm:
        g('s_mov_b32 s58, 0x7b800000'); g('s_mov_b32 s59, 0x4e000000')
    def group_consts(gi):
        r = SZ + 4 * gi; S, C = CB + 8 * gi, CB + 8 * gi + 4
        for h in range(2):
            g(f'v_lshlrev_b32 v{S + 2 * h}, 16, v{r + h}'); g(f'v_and_b32 v{S + 2 * h + 1}, 0xffff0000, v{r + h}')
            g(f'v_lshlrev_b32 v{C + 2 * h}, 16, v{r + 2 + h}'); g(f'v_and_b32 v{C + 2 * h + 1}, 0xffff0000, v{r + 2 + h}')
        for t in range(4): g(f'v_mul_f32_e64 v{C + t}, -v{C + t}, v{S + t}')
        if denorm:
            for t in range(4): g(f'v_mul_f32 v{C + t}, 0x31000000, v{C + t}')
            for t in range(4): g(f'v_mul_f32 v{S + t}, s58, v{S + t}')
    for s in range(w_pre, w_pre + w_mid):
        for j in range(8): w_load(s, j)
    if lazy:
        assert grouped
        g('s_waitcnt lgkmcnt(10)')
        group_consts(0)
        g('s_waitcnt lgkmcnt(0)')
    else:
        g('s_waitcnt lgkmcnt(10)')
        for gi in range(5): group_consts(gi)
        g('s_waitcnt lgkmcnt(0)')
        for gi in range(5, 8): group_consts(gi)
    for q in range(8):
        g(f'v_lshlrev_b32 v{AR + q}, 16, v{AR + q}')
        if denorm: g(f'v_mul_f32 v{AR + q}, s59, v{AR + q}')
    def stage_consts(s):
        if grouped: return []
        ops = [lambda: (sigma('s91', s), g('s_lshr_b32 s91, s91, 1'), g('s_lshl_b32 s91, s91, 3'), g('s_set_gpr_idx_on s91, gpr_idx(SRC0)'))]
        for i in range(8): ops.append(lambda i=i: g(f'v_mov_b32 v{S0 + i}, v{CB + i}'))
        ops.append(lambda: g('s_set_gpr_idx_off'))
        return ops
    def col_ops(s, t):
        regs = [qreg(s, j) + t for j in range(8)]
        ops = []
        S0, C0 = (CB + 8 * (s // 2), CB + 8 * (s // 2) + 4) if grouped else (8, 12)
        if 'V' not in abl:
            if not denorm:
                for r in regs: ops.append(lambda r=r: g(f'v_cvt_f32_i32 v{r}, v{r}'))
            for r in regs: ops.append(lambda r=r: g(f'v_fma_f32 v{r}, v{r}, v{S0 + t}, v{C0 + t}'))
            for j, r in enumerate(regs):
                ops.append(lambda r=r, j=j: g(f'v_mul_f32_dpp v{r}, v{AR + (s >> 1)}, v{r} row_newbcast:{8 * (s & 1) + j} row_mask:0xf bank_mask:0xf'))
        for jp in range(4):
            ops.append(lambda jp=jp: g(f'v_cvt_pk_bf16_f32 v{P0 + 4 * t + jp}, v{regs[2 * jp]}, v{regs[2 * jp + 1]}'))
        return ops
    for s in range(NS):
        loads = [(lambda ss=ss, j=j: w_load(ss, j)) for ss in wsched[s] for j in range(8)]
        per = [loads[len(loads) * t // 4: len(loads) * (t + 1) // 4] for t in range(4)]
        for t in range(4):
            if t == 0:
                for f in stage_consts(s): f()
                if lazy and s % 2 == 1 and s < NS - 1: group_consts((s + 1) // 2)
                tl(f'pre{s}')
                assert w_next[0] > s
                vm.wait(('W', s))
                tl(f'd{s}')
            interleave(col_ops(s, t), per[t])
            if t == 0 and s >= 2:
                g('s_waitcnt lgkmcnt(0)'); g('s_barrier')
                tl(f'p{s - 1}')
            if 'D' not in abl:
                g(f'ds_write_b128 v{VWW}, v[{P0 + 4 * t}:{P0 + 4 * t + 3}] offset:{(s & 1) * 16384 + t * 512}')
        if s == 0 or s == NS - 1:
            g('s_waitcnt lgkmcnt(0)'); g('s_barrier')
            tl(f'p{s}')
    if stamps:
        if not mark:
            g('s_memtime s[66:67]'); g('s_memtime s[68:69]')
        g('s_memtime s[70:71]'); g('s_memrealtime s[72:73]')
        g('s_add_u32 s3, s3, 4')
        g('L_stamp:')
        g('s_waitcnt lgkmcnt(0)')
        g('s_mov_b32 s76, s60'); g('s_mov_b32 s77, s61'); g(f's_mov_b32 s78, {256 if stamps == "dbg" else 0x10000000}'); g('s_mov_b32 s79, 0x20000')
        if stamps == 'dbg':
            g('s_cmp_lg_u32 s3, 0'); g('s_cbranch_scc1 L_end')
            g(f's_sub_u32 s51, s2, {NH}')
            g('s_mul_i32 s48, s51, 0x38f'); g('s_lshr_b32 s49, s48, 16'); g('s_mul_i32 s50, s49, 72'); g('s_cmp_lg_u32 s50, s51'); g('s_cbranch_scc1 L_end')
            g('v_mov_b32 v16, s62')
            g('s_sub_u32 s48, s66, s64'); g('s_sub_u32 s50, s70, s68'); g('s_lshl_b32 s50, s50, 16'); g('s_or_b32 s48, s48, s50'); g('v_mov_b32 v17, s48')
            g('s_sub_u32 s48, s68, s66'); g('v_mov_b32 v18, s48')
            g('s_sub_u32 s48, s72, s62'); g('v_mov_b32 v19, s48')
            g('s_lshl_b32 s48, s49, 4'); g('v_mov_b32 v24, s48')
            g('v_cmp_eq_u32 vcc, 0, v0'); g('s_and_saveexec_b64 s[74:75], vcc'); g('s_cbranch_execz L_end')
            g('buffer_store_dwordx4 v[16:19], v24, s[76:79], 0 offen')
            g('s_endpgm')
        g('s_lshl_b32 s48, s2, 3'); g('s_add_u32 s48, s48, s3'); g('s_lshl_b32 s48, s48, 5')
        for i, r in enumerate((62, 64, 66, 68, 70, 72)): g(f'v_mov_b32 v{16 + i}, s{r}')
        g('s_getreg_b32 s49, hwreg(HW_REG_XCC_ID)'); g('v_mov_b32 v22, s49'); g('v_mov_b32 v23, s63')
        g('v_mov_b32 v24, s48')
        g('v_cmp_eq_u32 vcc, 0, v0'); g('s_and_saveexec_b64 s[74:75], vcc'); g('s_cbranch_execz L_end')
        g('buffer_store_dwordx4 v[16:19], v24, s[76:79], 0 offen')
        g('buffer_store_dwordx4 v[20:23], v24, s[76:79], 0 offen offset:16')
    g('s_endpgm')

    if helpers:
        g('L_help:')
        if hx_only:
            g('s_nop 3')
            g('s_lshl_b32 s48, s2, 3'); g('s_add_u32 s48, s48, s3'); g('s_lshl_b32 s49, s48, 14')
            g('v_lshrrev_b32 v4, 3, v0'); g('v_lshlrev_b32 v4, 11, v4'); g('v_and_b32 v3, 7, v0'); g('v_lshlrev_b32 v3, 7, v3')
            g('v_add_u32 v3, v3, v4'); g('v_add_u32 v3, s49, v3')
            g('s_mov_b32 s19, 0x20000'); g(f's_mov_b32 s18, {M * K * 2}')
            g('s_waitcnt lgkmcnt(0)')
            g('s_mov_b32 s16, s4'); g('s_mov_b32 s17, s5')
            for i, half in enumerate(helpers):
                g(f'buffer_load_dword v{8 + i}, v3, s[16:19], 0 offen offset:{half * 1024}')
            g('s_endpgm')
        g('s_lshr_b32 s48, s2, 3'); g('s_lshl_b32 s48, s48, 3'); g('s_add_u32 s48, s48, s3')
        g('s_lshr_b32 s49, s30, 1'); g('s_mul_i32 s49, s49, 3584')
        g(f's_mul_i32 s50, s48, {2 * WROW}'); g('s_add_u32 s49, s49, s50')
        g('v_min_u32 v2, 55, v0'); g('v_cmp_le_u32 vcc, 28, v2'); g('v_subrev_u32 v3, 28, v2'); g('s_nop 0'); g('v_cndmask_b32 v3, v2, v3, vcc')
        g('v_lshlrev_b32 v3, 7, v3'); g(f'v_mov_b32 v4, {WROW}'); g('v_cndmask_b32 v4, 0, v4, vcc'); g('v_add_u32 v2, v3, v4'); g('v_add_u32 v2, s49, v2')
        g('s_and_b32 s49, s30, 1'); g('s_lshl_b32 s49, s49, 10'); g('s_lshl_b32 s50, s48, 5'); g('s_add_u32 s49, s49, s50'); g('s_lshl_b32 s49, s49, 11')
        g('v_and_b32 v3, 31, v0'); g('v_lshlrev_b32 v3, 11, v3'); g('v_add_u32 v3, s49, v3')
        g('s_mov_b32 s51, 0')
        if sx:
            g('s_lshr_b32 s51, s30, 1'); g('s_xor_b32 s51, s51, s30'); g('s_and_b32 s51, s51, 1'); g(f's_mul_i32 s51, s51, {sx}')
        g('s_mov_b32 s19, 0x20000'); g('s_mov_b32 s23, 0x20000'); g(f's_mov_b32 s18, {M * K * 2}'); g(f's_mov_b32 s22, {K * WROW}')
        g('s_waitcnt lgkmcnt(0)')
        g('s_mov_b32 s16, s4'); g('s_mov_b32 s17, s5'); g('s_mov_b32 s20, s6'); g('s_mov_b32 s21, s7')
        for i, st in enumerate(helpers):
            g(f's_xor_b32 s52, s51, {st}'); g(f's_mul_i32 s48, s52, {64 * WROW}'); g('s_lshl_b32 s50, s52, 7')
            g('s_mov_b32 exec_hi, 0x00ffffff')
            g(f'buffer_load_dword v{8 + i}, v2, s[20:23], s48 offen')
            g('s_mov_b32 exec_hi, 0')
            g(f'buffer_load_dword v{32 + i}, v3, s[16:19], s50 offen')
        g('s_endpgm')
    g('L_end:')
    g('s_endpgm')
    g('.section .rodata,"a"'); g('.p2align 6'); g(f'.amdhsa_kernel {KN}')
    g('  .amdhsa_next_free_vgpr 256'); g('  .amdhsa_next_free_sgpr 100'); g('  .amdhsa_accum_offset 256')
    g('  .amdhsa_group_segment_fixed_size 0'); g('  .amdhsa_kernarg_size 64'); g('  .amdhsa_user_sgpr_count 2')
    g('  .amdhsa_user_sgpr_kernarg_segment_ptr 1'); g('  .amdhsa_system_sgpr_workgroup_id_x 1')
    g('  .amdhsa_float_denorm_mode_32 3')
    g('.end_amdhsa_kernel')
    return g.text()
```
